```python
import torch

def _softmax(x, axis=-1):
    return torch.softmax(x, dim=axis)
def _gelu(x):
    return torch.nn.functional.gelu(x, approximate="tanh")
def _silu(x):
    return torch.nn.functional.silu(x)
def _sigmoid(x):
    return torch.sigmoid(x)
def _layernorm(x, axis=-1, eps=1e-5):
    m = x.mean(dim=axis, keepdim=True)
    v = x.var(dim=axis, keepdim=True, unbiased=False)
    return (x - m) / torch.sqrt(v + eps)
def _scatter_add(tgt, idx, src, axis=0):
    return tgt.clone().index_add_(axis, idx, src)
def _segment_sum(src, seg, n):
    out = torch.zeros((n,) + src.shape[1:], dtype=src.dtype)
    return out.index_add_(0, seg, src)
def _pad(x, pw):
    flat = tuple(v for pair in reversed(pw) for v in pair)
    return torch.nn.functional.pad(x, flat)

kernel_name = 'standalone__paged_block_table_kv_radixattention__decode'

def setup_inputs():

    _w = (lambda a: (lambda t: t.to(torch.bfloat16) if t.is_floating_point() else t)(torch.as_tensor(a)))
    B, H, Hkv, Dh = 4, 16, 8, 256
    Lk = 4096
    bs = 16
    nb = max(2, Lk // bs)
    P = max(1, nb // 2)
    n_phys = P + B * (nb - P)
    shared = torch.arange(P, dtype=torch.int64)
    priv = P + torch.arange(B * (nb - P), dtype=torch.int64).reshape(B, nb - P)
    bt = torch.cat([torch.tile(shared[None, :], (B, 1)), priv], dim=1)
    ctx = nb * bs - (torch.arange(1, B + 1, dtype=torch.int64) * 2654435761) % max(1, (nb * bs - P * bs) // 2)
    return {
        "q": _w((lambda *s: torch.randn(*s, dtype=torch.bfloat16) * 0.8)(B, H, Dh)),
        "k_cache": _w((lambda *s: torch.randn(*s, dtype=torch.bfloat16) * 0.8)(n_phys, bs, Hkv, Dh)),
        "v_cache": _w((lambda *s: torch.randn(*s, dtype=torch.bfloat16) * 0.05)(n_phys, bs, Hkv, Dh)),
        "block_table": _w(bt.to(torch.int64)),
        "ctx_lens": _w(torch.as_tensor(ctx).to(torch.int64)),
    }

def reference(q, k_cache, v_cache, block_table, ctx_lens):
    B, H, Dh = q.shape
    n_phys, bs, Hkv, _ = k_cache.shape
    nb = block_table.shape[1]
    Lk = nb * bs
    rep = H // Hkv
    k = k_cache[block_table].reshape(B, Lk, Hkv, Dh)
    v = v_cache[block_table].reshape(B, Lk, Hkv, Dh)
    k = (lambda x, n, axis: torch.repeat_interleave(x, n, dim=axis))(k, rep, axis=2)
    v = (lambda x, n, axis: torch.repeat_interleave(x, n, dim=axis))(v, rep, axis=2)
    scores = torch.einsum("bhd,bkhd->bhk", q, k) * (Dh ** -0.5)
    pos = torch.arange(Lk)
    valid = pos[None, :] < ctx_lens[:, None]
    scores = torch.where(valid[:, None, :], scores, -1e9)
    p = _softmax(scores, axis=-1)
    return torch.einsum("bhk,bkhd->bhd", p, v)
```

```python
import sys, os, argparse
NAME = "standalone__paged_block_table_kv_radixattention__decode_kernel"

HEADER = """; Kernarg layout for this problem (64 bytes, ptrs only, base s[0:1]):
; @launch grid=(256,1,1) block=(512,1,1) lds=8192
"""

L_P, L_WMAX, L_WL, L_MROW, L_FROW, L_STAT, L_LIST = 0, 4096, 4224, 4352, 4384, 4416, 4480
W_ML, W_O = 4096, 65536
KVBYTES = 41943040
NEG_BIG = 0xf149f2ca
NEG_INF = 0xff800000
import struct, math
def f2u(f): return struct.unpack("<I", struct.pack("<f", f))[0]
SCALE = f2u(0.0625 * math.log2(math.e))

class G:
    def __init__(s, opt):
        s.L = []; s.o = opt
    def A(s, x): s.L.append("    " + x)
    def lab(s, x): s.L.append(x + ":")
    def C(s, x): s.L.append("    ; " + x)
    def stamp(s, i):
        if s.o.stamps: s.A(f"s_memrealtime s[{84+2*i}:{85+2*i}]")
    def stamp_out(s):
        if not s.o.stamps: return
        A = s.A
        A("s_waitcnt lgkmcnt(0)")
        A("s_mov_b64 exec, -1")
        A("s_lshl_b32 s50, s2, 3"); A("s_add_u32 s50, s50, s3"); A("s_lshl_b32 s50, s50, 7")
        A("s_add_u32 s50, s50, 0x8000000")
        A("v_mov_b32 v3, s50")
        for i in range(8):
            A(f"v_mov_b32 v4, s{84+2*i}"); A(f"v_mov_b32 v5, s{85+2*i}")
            A(f"buffer_store_dwordx2 v[4:5], v3, s[28:31], 0 offen offset:{8*i}")
            A("s_nop 1")
        A("s_getreg_b32 s50, hwreg(HW_REG_XCC_ID)"); A("s_getreg_b32 s51, hwreg(HW_REG_HW_ID)")
        A("v_mov_b32 v4, s51"); A("v_mov_b32 v5, s50")
        A(f"buffer_store_dwordx2 v[4:5], v3, s[28:31], 0 offen offset:120")

def gen(o):
    g = G(o); A = g.A; lab = g.lab; C = g.C
    LDF = o.ldflags
    STF = o.stflags
    PLF = o.plflags
    vOff0, vOff1, vPhys, vNv = "v1", "v2", "v4", "v5"
    Q0, D0 = 8, 24
    g.L.append('.amdgcn_target "amdgcn-amd-amdhsa--gfx950"\n.text')
    g.L.append(f".globl {NAME}\n.p2align 8\n.type {NAME},@function\n{NAME}:")
    g.stamp(0)
    A("s_load_dwordx16 s[4:19], s[0:1], 0")
    A("s_cmp_ge_u32 s2, 256")
    A("s_cbranch_scc1 L_end")
    A("v_lshrrev_b32 v1, 6, v0")
    A("v_and_b32 v0, 63, v0")
    A("s_and_b32 s20, s2, 7")
    A("v_readfirstlane_b32 s3, v1")
    A("s_lshr_b32 s21, s2, 3")
    C("expected work list (checked against block_table / ctx_lens later; general path otherwise)")
    A("s_mul_i32 s50, s21, 498")
    A("s_add_u32 s51, s50, 498")
    A("s_lshr_b32 s50, s50, 5")
    A("s_lshr_b32 s51, s51, 5")
    A("s_and_b32 s22, s3, 3")
    A("s_lshl_b32 s23, s22, 2")
    A("s_cmp_lt_u32 s3, 4")
    A("s_cselect_b32 s52, 4, 0")
    A("s_cselect_b32 s23, s23, 0")
    A("s_add_u32 s50, s50, s23")
    A("v_bfe_u32 v6, v0, s52, 4")
    A("v_add_u32 v3, s50, v6")
    A("v_lshlrev_b32 v6, 3, v6")
    A("v_cmp_le_u32 vcc, 229, v3")
    A("v_add_u32 v4, 27, v3")
    A("s_lshl_b32 s53, s20, 9                  ; h*512")
    A("v_cndmask_b32 v4, v3, v4, vcc")
    A("v_cmp_le_u32 vcc, 303, v3")
    A("v_add_u32 v5, 54, v4")
    A("s_lshl_b32 s54, s20, 7")
    A("v_cndmask_b32 v4, v4, v5, vcc")
    A("v_cmp_le_u32 vcc, 414, v3")
    A("v_add_u32 v5, 17, v4")
    A("s_mov_b32 s26, %d" % KVBYTES)
    A("v_cndmask_b32 v4, v4, v5, vcc")
    A("v_cmp_le_u32 vcc, s51, v3")
    A("v_lshl_add_u32 v4, v4, 16, s53")
    A("v_bfrev_b32 v5, 1")
    A("v_cndmask_b32 v4, v4, v5, vcc")
    A("s_mov_b32 s27, 0x20000")
    A("s_mov_b32 s30, 0x10000000")
    A("s_mov_b32 s31, 0x20000")
    A("s_mov_b32 s55, 0")
    C("token of this lane: 2*bit3 + 4*bit4 + bit5")
    A("v_bfe_u32 v7, v0, 3, 2")
    A("v_lshrrev_b32 v3, 5, v0")
    A("v_lshl_or_b32 v7, v7, 1, v3")
    A("s_cmp_ge_u32 s3, 4")
    A("s_cbranch_scc1 L_vrole")

    vCtx, vScale, vM, vL, vB128, vTok, vTok8 = "v212", "v213", "v214", "v215", "v216", "v7", "v217"
    vLdsQ, vLdsP, vNinf, vF = "v218", "v219", "v220", "v221"
    NV = 222
    accs = [152, 168]; S0 = 184; T0 = 196
    for i in range(4): A(f"v_readlane_b32 s{64+i}, v4, {16*i}")
    C("K lane offsets: t*4096 + 64*(l>>5) + 16*(l&3)")
    A("v_bfe_u32 v1, v0, 2, 3")
    A("v_lshlrev_b32 v1, 12, v1")
    A("v_lshl_or_b32 v1, v3, 6, v1")
    A("v_and_b32 v3, 3, v0")
    A("v_lshl_or_b32 v1, v3, 4, v1")
    A("v_add_u32 v2, 0x8000, v1")
    C("Q lane offset: (q>>1)*8192 + (q&1)*512 + h*1024 + 16*(l>>3)")
    A("v_bfe_u32 v216, v0, 1, 2")
    A("v_and_b32 v3, 1, v0")
    A("v_lshlrev_b32 v3, 9, v3")
    A("v_lshl_or_b32 v3, v216, 13, v3")
    A("v_lshrrev_b32 v192, 3, v0")
    A("v_lshl_or_b32 v3, v192, 4, v3")
    A("s_lshl_b32 s56, s20, 10")
    A("v_add_u32 v3, s56, v3")
    A("v_lshlrev_b32 v192, 2, v216             ; 4*b")
    A("v_lshlrev_b32 v226, 4, v0")
    A("s_waitcnt lgkmcnt(0)")
    g.stamp(1)
    A("s_mov_b32 s24, s6")
    A("s_and_b32 s25, s7, 0xffff")
    A(f"global_load_dword {vCtx}, v192, s[12:13]")
    for i in range(4): A(f"global_load_dwordx4 v[{Q0+4*i}:{Q0+4*i+3}], v3, s[4:5] offset:{128*i}")
    A("s_load_dword s48, s[18:19], s54")
    lab("L_kround")
    for hb in range(8):
        for i in range(4):
            r = D0 + 16*hb + 4*i
            A(f"buffer_load_dwordx4 v[{r}:{r+3}], {vOff1 if hb&1 else vOff0}, s[24:27], s{64+(hb>>1)} offen offset:{128*i} {LDF}")
    for b in range(4): A(f"global_load_dwordx4 v[{T0+4*b}:{T0+4*b+3}], v226, s[10:11] offset:{1024*b}")
    g.stamp(2)
    C("first pass only: constants")
    A("s_cmp_lg_u32 s55, 0")
    A("s_cbranch_scc1 L_kconst_done")
    A("s_mov_b32 s28, s18")
    A("s_and_b32 s29, s19, 0xffff")
    A(f"v_mov_b32 {vScale}, 0x{SCALE:08x}")
    A(f"v_mov_b32 {vM}, 0x{NEG_BIG:08x}")
    A(f"v_mov_b32 {vL}, 0")
    A(f"v_mov_b32 {vNinf}, 0x{NEG_INF:08x}")
    A(f"v_add_u32 {vTok8}, 8, {vTok}")
    A("v_add_u32 v6, v6, v216")
    A("s_lshl_b32 s56, s22, 5")
    A(f"s_add_u32 s56, s56, {L_LIST}")
    A("v_add_u32 v6, s56, v6")
    A("v_lshlrev_b32 v194, 3, v216             ; 8*b")
    A("s_mov_b32 s56, 0x%08x" % (229 | 202 << 8 | 239 << 16 | 212 << 24))
    A("v_bfe_u32 v194, s56, v194, 8")
    A(f"v_lshlrev_b32 {vB128}, 7, v216")
    A(f"v_add_u32 {vB128}, 128, {vB128}         ; 128*b + 128")
    A("v_and_b32 v3, 7, v0")
    A(f"v_lshlrev_b32 {vLdsQ}, 4, v3            ; q*16")
    A("v_lshlrev_b32 v3, 1, v3")
    A("v_bfe_u32 v192, v0, 3, 1")
    A("v_and_b32 v195, 48, v0")
    A("v_or3_b32 v3, v3, v192, v195")
    A("s_lshl_b32 s56, s22, 10")
    A(f"v_lshl_add_u32 {vLdsP}, v3, 4, s56       ; P address")
    C("valid-token count of (item l>>4, sequence b) under the expected list")
    A("v_lshrrev_b32 v3, 16, v4")
    A(f"v_sub_u32 v192, v3, {vB128}")
    A("v_min_u32 v192, 128, v192")
    A("v_cmp_gt_u32 vcc, 128, v3")
    A("v_add_u32 v192, 128, v192")
    A("s_waitcnt vmcnt(40)")
    A("v_cndmask_b32 v3, v192, v3, vcc")
    A(f"v_mad_i32_i24 {vNv}, v3, -16, {vCtx}")
    lab("L_kconst_done")
    def qk_mfma(hb):
        acc = accs[hb & 1]
        A(f"s_waitcnt vmcnt({32 - 4*hb})")
        for i in range(4):
            r = D0 + 16*hb + 4*i
            c = "0" if i == 0 else f"v[{acc}:{acc+15}]"
            A(f"v_mfma_f32_32x32x16_bf16 v[{acc}:{acc+15}], v[{r}:{r+3}], v[{Q0+4*i}:{Q0+4*i+3}], {c}")
    def qk_red(hb):
        a = accs[hb & 1]; X = S0 + hb; Y = 192 + (hb & 1)
        T = [(X,0,1,5,3),(X,5,4,5,12),(X,2,3,10,3),(X,7,6,10,12),(Y,8,9,5,3),(Y,13,12,5,12),(Y,10,11,10,3),(Y,15,14,10,12)]
        for (d, own, oth, rm, bm) in T:
            A(f"v_add_f32_dpp v{d}, v{a+oth}, v{a+own} row_ror:8 row_mask:0x{rm:x} bank_mask:0x{bm:x}")
        A("s_nop 1")
        A(f"v_permlane16_swap_b32 v{X}, v{Y}")
        A("s_nop 0")
        A(f"v_add_f32 v{X}, v{X}, v{Y}")
    qk_mfma(0)
    for hb in range(8):
        if hb < 7: qk_mfma(hb+1)
        if hb == 0: A("s_nop 7")
        qk_red(hb)
    for e in range(8): A(f"v_mul_f32 v{S0+e}, v{S0+e}, {vScale}")
    C("verify the expected list (first pass)")
    A("s_cmp_lg_u32 s55, 0")
    A("s_cbranch_scc1 L_kverified")
    A("s_mov_b32 s57, 0                        ; status")
    A("s_mov_b32 s58, 0")
    A("v_lshlrev_b32 v152, 2, v0")
    A("v_add_u32 v153, 1, v152"); A("v_add_u32 v154, 2, v152"); A("v_add_u32 v155, 3, v152")
    A("v_and_b32 v156, 32, v0"); A("v_lshlrev_b32 v156, 2, v156")
    A(f"v_add_u32 v157, 15, {vCtx}"); A("v_lshrrev_b32 v157, 4, v157")
    A("v_xor_b32 v157, v157, v194")
    A("s_waitcnt vmcnt(0)")
    for b in range(4):
        for x in range(4): A(f"v_xor_b32 v{T0+4*b+x}, v{T0+4*b+x}, v{152+x}")
        if b < 3:
            for x in range(4): A(f"v_add_u32 v{152+x}, v{152+x}, v156")
        A(f"v_or3_b32 v157, v157, v{T0+4*b}, v{T0+4*b+1}")
        A(f"v_or3_b32 v157, v157, v{T0+4*b+2}, v{T0+4*b+3}")
    A("v_cmp_ne_u32 vcc, 0, v157")
    A("s_cbranch_vccnz L_slow")
    lab("L_kverified")
    C("broadcast nv of the 4 items to every lane")
    A(f"v_mov_b32 v{NV}, {vNv}"); A(f"v_mov_b32 v{NV+2}, {vNv}")
    A("s_nop 1")
    A(f"v_permlane32_swap_b32 v{NV}, v{NV+2}")
    A("s_nop 0")
    A(f"v_mov_b32 v{NV+1}, v{NV}"); A(f"v_mov_b32 v{NV+3}, v{NV+2}")
    A("s_nop 0")
    A(f"v_permlane16_swap_b32 v{NV}, v{NV+1}")
    A(f"v_permlane16_swap_b32 v{NV+2}, v{NV+3}")
    A("s_nop 0")
    for e in range(8): A(f"v_cmp_lt_i32 s[{68+2*e}:{69+2*e}], {vTok8 if e&1 else vTok}, v{NV+(e>>1)}")
    A("s_nop 0")
    for e in range(8): A(f"v_cndmask_b32 v{S0+e}, {vNinf}, v{S0+e}, s[{68+2*e}:{69+2*e}]")
    A(f"v_max3_f32 v152, v{S0}, v{S0+1}, v{S0+2}")
    A(f"v_max3_f32 v153, v{S0+3}, v{S0+4}, v{S0+5}")
    A(f"v_max3_f32 v152, v152, v{S0+6}, v{S0+7}")
    A("v_max_f32 v152, v152, v153")
    def xreduce(op, r, t):
        A("s_nop 1")
        A(f"{op}_dpp {r}, {r}, {r} row_ror:8 row_mask:0xf bank_mask:0xf")
        A(f"v_mov_b32 {t}, {r}")
        A("s_nop 1")
        A(f"v_permlane16_swap_b32 {r}, {t}")
        A("s_nop 0")
        A(f"{op} {r}, {r}, {t}")
        A(f"v_mov_b32 {t}, {r}")
        A("s_nop 1")
        A(f"v_permlane32_swap_b32 {r}, {t}")
        A("s_nop 0")
        A(f"{op} {r}, {r}, {t}")
    xreduce("v_max_f32", "v152", "v153")
    A("s_lshl_b32 s56, s22, 2")
    A(f"v_add_u32 v154, s56, {vLdsQ}")
    A(f"ds_write_b32 v154, v152 offset:{L_WMAX}")
    A("s_waitcnt lgkmcnt(0)")
    g.stamp(3)
    A("s_barrier")
    A(f"ds_read_b128 v[156:159], {vLdsQ} offset:{L_WMAX}")
    A("s_waitcnt lgkmcnt(0)")
    A("v_max3_f32 v152, v156, v157, v158")
    A(f"v_max3_f32 v152, v152, v159, {vM}")
    A(f"v_sub_f32 {vF}, {vM}, v152")
    A(f"v_mov_b32 {vM}, v152")
    for e in range(8): A(f"v_sub_f32 v{S0+e}, v{S0+e}, v152")
    A(f"v_exp_f32 {vF}, {vF}")
    for e in range(8): A(f"v_exp_f32 v{S0+e}, v{S0+e}")
    A(f"v_lshrrev_b32 v153, 2, {vLdsQ}            ; q*4")
    for n in range(4): A(f"v_cvt_pk_bf16_f32 v{156+n}, v{S0+2*n}, v{S0+2*n+1}")
    A(f"ds_write_b128 {vLdsP}, v[156:159] offset:{L_P}")
    A(f"ds_write_b32 v153, {vM} offset:{L_MROW}")
    A(f"ds_write_b32 v153, {vF} offset:{L_FROW}")
    A("v_mov_b32 v160, 0"); A("v_mov_b32 v161, s57")
    A(f"ds_write_b32 v160, v161 offset:{L_STAT}")
    A(f"v_add_f32 v152, v{S0}, v{S0+1}"); A(f"v_add_f32 v153, v{S0+2}, v{S0+3}")
    A(f"v_add_f32 v155, v{S0+4}, v{S0+5}"); A(f"v_add_f32 v162, v{S0+6}, v{S0+7}")
    A("v_add_f32 v152, v152, v153"); A("v_add_f32 v155, v155, v162"); A("v_add_f32 v152, v152, v155")
    xreduce("v_add_f32", "v152", "v153")
    A(f"ds_write_b32 v154, v152 offset:{L_WL}")
    A("s_waitcnt lgkmcnt(0)")
    g.stamp(4)
    A("s_barrier")
    g.stamp(5)
    A(f"ds_read_b128 v[156:159], {vLdsQ} offset:{L_WL}")
    A("s_waitcnt lgkmcnt(0)")
    A("v_add_f32 v156, v156, v157"); A("v_add_f32 v158, v158, v159"); A("v_add_f32 v156, v156, v158")
    A(f"v_fma_f32 {vL}, {vL}, {vF}, v156")
    A("s_cmp_lg_u32 s58, 0")
    A("s_cbranch_scc1 L_knext")
    C("launch tag from the epoch word")
    def mk_tag():
        A("s_add_u32 s49, s48, 1")
        A("s_and_b32 s56, s49, 0xff")
        A("s_mul_i32 s56, s56, 0x01010100")
        A("s_xor_b32 s59, s49, s56")
    mk_tag()
    A("s_lshl_b32 s56, s20, 8"); A("s_add_u32 s56, s56, s21"); A("s_lshl_b32 s56, s56, 4")
    A(f"s_add_u32 s56, s56, {W_ML}")
    A(f"v_lshl_add_u32 v152, {vLdsQ}, 5, s56      ; ML + ((h*8+q)*32+g)*16")
    A(f"v_mov_b32 v156, {vM}"); A(f"v_mov_b32 v157, {vL}"); A("v_mov_b32 v158, s59"); A("v_mov_b32 v159, s59")
    A("s_cmp_eq_u32 s3, 0")
    A("s_cselect_b64 exec, 0xff, 0")
    A(f"buffer_store_dwordx4 v[156:159], v152, s[28:31], 0 offen {STF}")
    A("s_mov_b64 exec, -1")
    C("consumer: row g>>2, slice g&3, 16 columns per wave")
    A("s_lshr_b32 s60, s21, 2                  ; row q")
    A("s_lshl_b32 s56, s20, 3"); A("s_add_u32 s56, s56, s60"); A("s_lshl_b32 s56, s56, 9")
    A(f"s_add_u32 s56, s56, {W_ML}")
    A("v_lshrrev_b32 v24, 2, v0")
    A("v_lshl_add_u32 v25, v24, 4, s56")
    A("s_lshl_b32 s56, s20, 5"); A("s_add_u32 s56, s56, s21"); A("s_lshl_b32 s56, s56, 13")
    A("s_lshl_b32 s61, s22, 6"); A("s_add_u32 s56, s56, s61")
    A(f"s_add_u32 s56, s56, {W_O}")
    A("v_and_b32 v27, 3, v0")
    A("v_lshlrev_b32 v26, 8, v24")
    A("v_lshl_or_b32 v26, v27, 4, v26")
    A("v_add_u32 v26, s56, v26                 ; O address")
    A("s_mov_b32 s61, 4096")
    A("s_mov_b32 s62, 0x0c0c0400")
    A("s_mov_b32 s63, 0x%x" % o.spin)
    C("out address")
    A("s_mov_b32 s36, s14"); A("s_and_b32 s37, s15, 0xffff"); A("s_mov_b32 s38, 32768"); A("s_mov_b32 s39, 0x20000")
    A("s_lshr_b32 s56, s60, 1"); A("s_lshl_b32 s56, s56, 13")
    A("s_and_b32 s40, s60, 1"); A("s_lshl_b32 s40, s40, 9"); A("s_add_u32 s56, s56, s40")
    A("s_lshl_b32 s40, s20, 10"); A("s_add_u32 s56, s56, s40")
    A("s_and_b32 s40, s21, 3"); A("s_lshl_b32 s40, s40, 7"); A("s_add_u32 s56, s56, s40")
    A("s_and_b32 s40, s22, 1"); A("s_lshl_b32 s40, s40, 6"); A("s_add_u32 s56, s56, s40")
    A("s_lshr_b32 s40, s22, 1"); A("s_lshl_b32 s40, s40, 3"); A("s_add_u32 s56, s56, s40")
    A("v_lshrrev_b32 v28, 4, v0")
    A("v_lshlrev_b32 v28, 1, v28")
    A("v_lshl_or_b32 v28, v27, 4, v28")
    A("v_add_u32 v28, s56, v28")
    for r in range(40, 48): A(f"v_mov_b32 v{r}, 0")
    lab("L_poll1")
    A(f"buffer_load_dwordx3 v[32:34], v25, s[28:31], 0 offen {PLF}")
    A(f"buffer_load_dwordx3 v[36:38], v25, s[28:31], 0 offen offset:256 {PLF}")
    A("s_sub_u32 s63, s63, 1")
    A("s_cbranch_scc1 L_end")
    A("s_waitcnt vmcnt(0)")
    A("v_cmp_ne_u32 vcc, s59, v34")
    A("v_cmp_ne_u32 s[40:41], s59, v38")
    A("s_or_b64 vcc, vcc, s[40:41]")
    if o.sleep1:
        A("s_cbranch_scc0 L_poll1_done")
        A(f"s_sleep {o.sleep1}")
        A("s_branch L_poll1")
        lab("L_poll1_done")
    else:
        A("s_cbranch_scc1 L_poll1")
    g.stamp(6)
    C("advance the epoch word once every workgroup of this head has read it")
    A("v_mov_b32 v56, s54"); A("v_mov_b32 v57, s49")
    A("s_or_b32 s56, s21, s3")
    A("s_cselect_b64 exec, 0, 1")
    A(f"buffer_store_dword v57, v56, s[28:31], 0 offen {STF}")
    A("s_mov_b64 exec, -1")
    A("v_max_f32 v29, v32, v36")
    def xred4(op, r, t):
        A("s_nop 1")
        A(f"{op}_dpp {r}, {r}, {r} row_ror:4 row_mask:0xf bank_mask:0xf")
        xreduce(op, r, t)
    xred4("v_max_f32", "v29", "v30")
    A("v_sub_f32 v32, v32, v29"); A("v_sub_f32 v36, v36, v29")
    A("v_exp_f32 v32, v32"); A("v_exp_f32 v36, v36")
    A("v_cmp_lt_f32 s[42:43], 0, v33"); A("v_cmp_lt_f32 s[44:45], 0, v37")
    A("v_mul_f32 v29, v32, v33"); A("v_fmac_f32 v29, v36, v37")
    xred4("v_add_f32", "v29", "v30")
    A("v_rcp_f32 v29, v29")
    A("s_nop 0")
    A("v_mul_f32 v32, v32, v29"); A("v_mul_f32 v36, v36, v29")
    lab("L_poll2")
    A("s_mov_b64 exec, s[42:43]")
    A(f"buffer_load_dwordx4 v[40:43], v26, s[28:31], 0 offen {PLF}")
    A("s_mov_b64 exec, s[44:45]")
    A(f"buffer_load_dwordx4 v[44:47], v26, s[28:31], s61 offen {PLF}")
    A("s_mov_b64 exec, -1")
    A("s_sub_u32 s63, s63, 1")
    A("s_cbranch_scc1 L_end")
    A("s_waitcnt vmcnt(1)")
    A("v_perm_b32 v48, v41, v40, s62"); A("v_perm_b32 v49, v43, v42, s62")
    A("v_lshl_or_b32 v48, v49, 16, v48")
    A("v_cmp_ne_u32 vcc, s59, v48")
    A("s_waitcnt vmcnt(0)")
    A("v_perm_b32 v50, v45, v44, s62"); A("v_perm_b32 v51, v47, v46, s62")
    A("s_and_b64 s[42:43], s[42:43], vcc")
    A("v_lshl_or_b32 v50, v51, 16, v50")
    A("v_cmp_ne_u32 vcc, s59, v50")
    for x in range(4): A(f"v_mul_f32 v{52+x}, v{40+x}, v32")
    A("s_and_b64 s[44:45], s[44:45], vcc")
    A("s_or_b64 s[40:41], s[42:43], s[44:45]")
    if o.sleep2:
        A("s_cbranch_scc0 L_poll2_done")
        A(f"s_sleep {o.sleep2}")
        A("s_branch L_poll2")
        lab("L_poll2_done")
    else:
        A("s_cbranch_scc1 L_poll2")
    for x in range(4): A(f"v_fmac_f32 v{52+x}, v{44+x}, v36")
    A("s_nop 0")
    A("v_permlane32_swap_b32 v52, v54")
    A("v_permlane32_swap_b32 v53, v55")
    A("s_nop 0")
    A("v_add_f32 v52, v52, v54"); A("v_add_f32 v53, v53, v55")
    A("s_nop 1")
    A("v_permlane16_swap_b32 v52, v53")
    A("s_nop 0")
    A("v_add_f32 v52, v52, v53")
    A("s_nop 1")
    A("v_add_f32_dpp v52, v52, v52 row_ror:8 row_mask:0xf bank_mask:0xf")
    A("s_mov_b64 exec, -1")
    A("s_nop 0")
    A("v_add_f32_dpp v52, v52, v52 row_ror:4 row_mask:0xf bank_mask:0xf")
    A("s_mov_b32 exec_lo, 0x000f000f")
    A("s_mov_b32 exec_hi, 0x000f000f")
    A("v_cvt_pk_bf16_f32 v52, v52, v52")
    A(f"buffer_store_short v52, v28, s[36:39], 0 offen {o.outflags}")
    g.stamp(7)
    g.stamp_out()
    lab("L_end")
    A("s_endpgm")

    B0, AC, P0, O0 = 152, 184, 216, 232
    lab("L_vrole")
    for i in range(16): A(f"v_readlane_b32 s{64+i}, v4, {i}")
    C("V lane offsets: tok*4096 + slice*128 + 16*(l&7)")
    A("v_and_b32 v3, 7, v0")
    A("v_lshlrev_b32 v1, 12, v7")
    A("v_lshl_or_b32 v1, v3, 4, v1")
    A("s_lshl_b32 s56, s22, 7")
    A("v_add_u32 v1, s56, v1")
    A("v_add_u32 v2, 0x8000, v1")
    A("s_waitcnt lgkmcnt(0)")
    g.stamp(1)
    A("s_mov_b32 s24, s8")
    A("s_and_b32 s25, s9, 0xffff")
    A("s_load_dword s48, s[18:19], s54")
    A("s_mov_b32 s28, s18")
    A("s_and_b32 s29, s19, 0xffff")
    for r in range(32): A(f"v_mov_b32 v{AC+r}, 0")
    A(f"v_add_u32 v6, {L_LIST}, v6")
    A("v_lshlrev_b32 v8, 4, v0")
    A("v_lshrrev_b32 v9, 3, v0")
    A("v_lshlrev_b32 v10, 15, v9")
    A("v_lshl_or_b32 v10, v3, 4, v10")
    A("s_lshl_b32 s56, s20, 18"); A("s_lshl_b32 s57, s22, 13"); A("s_add_u32 s56, s56, s57")
    A("s_lshl_b32 s57, s21, 8"); A("s_add_u32 s56, s56, s57"); A(f"s_add_u32 s56, s56, {W_O}")
    A("v_add_u32 v10, s56, v10")
    A("v_lshlrev_b32 v9, 2, v9                 ; q*4")
    A("s_mov_b32 s60, 0x05040100"); A("s_mov_b32 s61, 0x07060302")
    for x in range(4): A(f"s_mov_b32 s{40+x}, 0x0706050{x}")
    lab("L_vround")
    for k in range(32):
        if k == o.bar1:
            g.stamp(2)
            A("s_barrier")
            g.stamp(3)
        r = D0 + 4*k
        A(f"buffer_load_dwordx4 v[{r}:{r+3}], {vOff1 if k&1 else vOff0}, s[24:27], s{64+(k>>1)} offen {LDF}")
    A("s_waitcnt lgkmcnt(0)")
    mk_tag()
    A("v_mov_b32 v11, s59")
    A("v_mov_b32 v12, 0")
    g.stamp(4)
    A("s_barrier")
    g.stamp(5)
    for G_ in range(4): A(f"ds_read_b128 v[{P0+4*G_}:{P0+4*G_+3}], v8 offset:{L_P+1024*G_}")
    A(f"ds_read_b32 v13, v9 offset:{L_MROW}")
    A(f"ds_read_b32 v12, v12 offset:{L_STAT}")
    A("s_waitcnt lgkmcnt(0)")
    A("v_readfirstlane_b32 s57, v12")
    A(f"v_mov_b32 v14, 0x{NEG_BIG:08x}")
    A("v_cmp_lt_f32 s[46:47], v14, v13")
    A("s_or_b32 s56, s57, s55")
    A("s_cbranch_scc1 L_vspecial")
    lab("L_vpv")
    for G_ in range(4):
        base = D0 + 32*G_
        def perms(n, ms):
            for m in ms:
                a = base + 8*n + m; b = a + 4
                A(f"v_perm_b32 v{B0+4*(2*m)+n}, v{b}, v{a}, s60")
                A(f"v_perm_b32 v{B0+4*(2*m+1)+n}, v{b}, v{a}, s61")
        for n in range(3):
            A(f"s_waitcnt vmcnt({32 - (8*G_ + 2*n + 2)})")
            perms(n, range(4))
        A(f"s_waitcnt vmcnt({32 - (8*G_ + 8)})")
        if G_ == 3: g.stamp(6)
        def mf(j): A(f"v_mfma_f32_16x16x32_bf16 v[{AC+4*j}:{AC+4*j+3}], v[{P0+4*G_}:{P0+4*G_+3}], v[{B0+4*j}:{B0+4*j+3}], v[{AC+4*j}:{AC+4*j+3}]")
        perms(3, [0]); perms(3, [1]); mf(0); mf(1); perms(3, [2]); mf(2); mf(3); perms(3, [3]); mf(4); mf(5); mf(6); mf(7)
    lab("L_vpv_done")
    A("s_and_b32 s56, s57, 2")
    A("s_cbranch_scc1 L_vnext")
    C("sum the two token halves, tag, publish")
    def red(j):
        a = AC + 4*j
        A(f"v_add_f32_dpp v{O0+j}, v{a+1}, v{a} row_ror:8 row_mask:0xf bank_mask:0x3")
        A(f"v_add_f32_dpp v{O0+j}, v{a+2}, v{a+3} row_ror:8 row_mask:0xf bank_mask:0xc")
    for j in range(4): red(j)
    for j in range(4): A(f"v_perm_b32 v{O0+j}, v{O0+j}, v11, s{40+j}")
    for j in range(4, 8): red(j)
    A("s_mov_b64 exec, s[46:47]")
    A(f"buffer_store_dwordx4 v[{O0}:{O0+3}], v10, s[28:31], 0 offen {STF}")
    for j in range(4, 8): A(f"v_perm_b32 v{O0+j}, v{O0+j}, v11, s{40+j-4}")
    A(f"buffer_store_dwordx4 v[{O0+4}:{O0+7}], v10, s[28:31], 0 offen offset:128 {STF}")
    g.stamp(7)
    g.stamp_out()
    A("s_endpgm")

    lab("L_vspecial")
    A("s_and_b32 s56, s57, 1")
    A("s_cbranch_scc1 L_vpv_done")
    C("rescale accumulators by the running-max factor")
    A("v_lshrrev_b32 v14, 4, v0"); A("v_lshlrev_b32 v14, 3, v14")
    A(f"ds_read_b64 v[16:17], v14 offset:{L_FROW}")
    A("s_waitcnt lgkmcnt(0)")
    for j in range(8):
        for r in range(4): A(f"v_mul_f32 v{AC+4*j+r}, v{AC+4*j+r}, v{16+(r>>1)}")
    A("s_branch L_vpv")
    lab("L_vnext")
    A("s_waitcnt vmcnt(0)")
    A("s_lshl_b32 s56, s55, 7")
    A("v_add_u32 v14, s56, v6")
    A("ds_read_b32 v4, v14")
    A("s_add_u32 s55, s55, 1")
    A("s_waitcnt lgkmcnt(0)")
    for i in range(16): A(f"v_readlane_b32 s{64+i}, v4, {i}")
    A("s_nop 7")
    A("s_branch L_vround")

    lab("L_knext")
    A("s_lshl_b32 s56, s55, 7")
    A("v_add_u32 v152, s56, v6")
    A("v_and_b32 v153, -4, v152")
    A("ds_read_b32 v4, v153")
    A(f"ds_read_u8 {vNv}, v152 offset:4")
    A("s_add_u32 s55, s55, 1")
    A("s_sub_u32 s58, s58, 1")
    A("s_cmp_lg_u32 s58, 0"); A("s_cselect_b32 s57, 2, 0")
    A("s_waitcnt lgkmcnt(0)")
    for i in range(4): A(f"v_readlane_b32 s{64+i}, v4, {16*i}")
    A("s_nop 7")
    A("s_branch L_kround")

    lab("L_slow")
    C("general work list: one item per distinct (position, physical block)")
    TB, PK, NVv = 24, 40, 56
    A("s_load_dwordx4 s[44:47], s[12:13], 0")
    A("v_lshlrev_b32 v60, 2, v0")
    for b in range(4):
        for e in range(4): A(f"global_load_dword v{TB+4*b+e}, v60, s[10:11] offset:{1024*b+256*e}")
    A(f"v_cmp_lt_i32 vcc, 0, {vCtx}")
    A("s_nop 1")
    A(f"v_cndmask_b32 {vScale}, 0, {vScale}, vcc")
    A("s_waitcnt vmcnt(0) lgkmcnt(0)")
    for b in range(4):
        A(f"s_cmp_le_i32 s{44+b}, 0"); A(f"s_cselect_b32 s{44+b}, 4096, s{44+b}"); A(f"s_min_i32 s{44+b}, s{44+b}, 4096")
    for e in range(4):
        A(f"v_lshlrev_b32 v61, 4, v0"); A(f"v_add_u32 v61, {1024*e}, v61")
        for b in range(4):
            t = TB+4*b+e
            A(f"v_cmp_gt_i32 vcc, 0, v{t}"); A(f"v_add_u32 v62, 640, v{t}"); A("s_nop 0"); A(f"v_cndmask_b32 v{t}, v{t}, v62, vcc")
            A(f"v_sub_u32 v{NVv+b}, s{44+b}, v61"); A(f"v_med3_i32 v{NVv+b}, v{NVv+b}, 0, 16")
            A(f"v_cmp_lt_i32 vcc, 0, v{NVv+b}"); A(f"v_lshlrev_b32 v{NVv+b}, {8*b}, v{NVv+b}"); A("s_nop 0")
            A(f"v_cndmask_b32 v{t}, {-1-b}, v{t}, vcc")
        for b in range(4):
            t = TB+4*b+e; p = PK+4*b+e
            A(f"v_mov_b32 v{p}, v{NVv+b}")
            for b2 in range(b+1, 4):
                A(f"v_cmp_eq_u32 vcc, v{t}, v{TB+4*b2+e}"); A("s_nop 1"); A(f"v_cndmask_b32 v62, 0, v{NVv+b2}, vcc"); A(f"v_or_b32 v{p}, v{p}, v62")
            for b2 in range(b):
                A(f"v_cmp_ne_u32 vcc, v{t}, v{TB+4*b2+e}"); A("s_nop 1"); A(f"v_cndmask_b32 v{p}, 0, v{p}, vcc")
    A("s_mov_b32 s56, 0")
    for k in range(16):
        A(f"v_cmp_ne_u32 vcc, 0, v{PK+k}"); A(f"s_mov_b32 s{68+k}, s56"); A("s_bcnt1_i32_b64 s40, vcc"); A("s_add_u32 s56, s56, s40")
    A("s_mul_i32 s40, s21, s56"); A("s_add_u32 s41, s40, s56"); A("s_lshr_b32 s40, s40, 5"); A("s_lshr_b32 s41, s41, 5")
    A("s_sub_u32 s41, s41, s40")
    A("v_and_b32 v61, 31, v0"); A("v_lshlrev_b32 v61, 3, v61"); A("v_bfrev_b32 v62, 1"); A("v_mov_b32 v63, 0")
    A(f"ds_write_b64 v61, v[62:63] offset:{L_LIST}")
    for k in range(16):
        A(f"v_cmp_ne_u32 s[42:43], 0, v{PK+k}")
        A(f"s_sub_u32 s56, s{68+k}, s40")
        A(f"v_lshl_add_u32 v62, v{TB+k}, 16, s53")
        A(f"v_mov_b32 v63, v{PK+k}")
        A("v_mbcnt_lo_u32_b32 v61, s42, 0"); A("v_mbcnt_hi_u32_b32 v61, s43, v61")
        A("v_add_u32 v61, s56, v61")
        A("v_cmp_gt_u32 vcc, s41, v61")
        A("v_lshlrev_b32 v61, 3, v61")
        A("s_and_b64 exec, vcc, s[42:43]")
        A(f"ds_write_b64 v61, v[62:63] offset:{L_LIST}")
        A("s_mov_b64 exec, -1")
    A("s_add_u32 s58, s41, 15"); A("s_lshr_b32 s58, s58, 4")
    A(f"v_mov_b32 {vNv}, 0")
    A("s_cmp_lg_u32 s58, 0"); A("s_cselect_b32 s57, 3, 1")
    A("s_branch L_kverified")
    txt = "\n".join(x for x in g.L if x is not None)
    return txt

KD = f"""
.section .rodata,"a"
.p2align 6
.amdhsa_kernel {NAME}
  .amdhsa_next_free_vgpr 256
  .amdhsa_next_free_sgpr 102
  .amdhsa_accum_offset 256
  .amdhsa_group_segment_fixed_size 0
  .amdhsa_kernarg_size 64
  .amdhsa_user_sgpr_count 2
  .amdhsa_user_sgpr_kernarg_segment_ptr 1
  .amdhsa_system_sgpr_workgroup_id_x 1
.end_amdhsa_kernel
"""
def parser():
    p = argparse.ArgumentParser()
    p.add_argument("--stamps", type=int, default=0)
    p.add_argument("--ldflags", default="nt")
    p.add_argument("--stflags", default="sc1")
    p.add_argument("--plflags", default="sc1")
    p.add_argument("--outflags", default="")
    p.add_argument("--bar1", type=int, default=24)
    p.add_argument("--sleep1", type=int, default=0)
    p.add_argument("--sleep2", type=int, default=0)
    p.add_argument("--spin", type=lambda x: int(x, 0), default=0x200000)
    p.add_argument("-o", default="out.s")
    return p
if __name__ == "__main__":
    o = parser().parse_args()
    open(o.o, "w").write(HEADER + gen(o) + KD)
```

```python
import sys, os, argparse
NAME = "standalone__paged_block_table_kv_radixattention__decode_kernel"

HEADER = """; Kernarg layout for this problem (64 bytes, ptrs only, base s[0:1]):
; @launch grid=(256,1,1) block=(512,1,1) lds=8192
"""

L_P, L_WMAX, L_WL, L_MROW, L_FROW, L_STAT, L_LIST = 0, 4096, 4224, 4352, 4384, 4416, 4480
W_ML, W_O = 4096, 65536
KVBYTES = 41943040
NEG_BIG = 0xf149f2ca
NEG_INF = 0xff800000
import struct, math
def f2u(f): return struct.unpack("<I", struct.pack("<f", f))[0]
SCALE = f2u(0.0625 * math.log2(math.e))

class G:
    def __init__(s, opt):
        s.L = []; s.o = opt
    def A(s, x): s.L.append("    " + x)
    def lab(s, x): s.L.append(x + ":")
    def C(s, x): s.L.append("    ; " + x)
    def stamp(s, i):
        if s.o.stamps: s.A(f"s_memrealtime s[{84+2*i}:{85+2*i}]")
    def stamp_out(s, role):
        if not s.o.stamps: return
        A = s.A
        if s.o.probe:
            pr, pi = s.o.probe[0], int(s.o.probe[1:])
            if pr != role: return
            A("s_waitcnt lgkmcnt(0)")
            if s.o.probewg >= 0:
                A(f"s_cmp_lg_u32 s2, {s.o.probewg}"); A(f"s_cbranch_scc1 L_pe{role}")
            A(f"s_sub_u32 s50, s{84+2*pi}, s84")
            A("s_mul_i32 s50, s50, 10")
            A("s_min_u32 s50, s50, 100000")
            A("s_memrealtime s[84:85]")
            A("s_waitcnt lgkmcnt(0)")
            s.lab(f"L_pl{role}")
            A("s_memrealtime s[86:87]")
            A("s_waitcnt lgkmcnt(0)")
            A("s_sub_u32 s51, s86, s84")
            A("s_cmp_lt_u32 s51, s50")
            A(f"s_cbranch_scc1 L_pl{role}")
            s.lab(f"L_pe{role}")
            return
        A("s_waitcnt lgkmcnt(0)")
        A("s_mov_b64 exec, -1")
        A("s_lshl_b32 s50, s2, 3"); A("s_add_u32 s50, s50, s3"); A("s_lshl_b32 s50, s50, 7")
        A("s_add_u32 s50, s50, 0x8000000")
        A("v_mov_b32 v3, s50")
        for i in range(8):
            A(f"v_mov_b32 v4, s{84+2*i}"); A(f"v_mov_b32 v5, s{85+2*i}")
            A(f"buffer_store_dwordx2 v[4:5], v3, s[28:31], 0 offen offset:{8*i}")
            A("s_nop 1")
        A("s_getreg_b32 s50, hwreg(HW_REG_XCC_ID)"); A("s_getreg_b32 s51, hwreg(HW_REG_HW_ID)")
        A("v_mov_b32 v4, s51"); A("v_mov_b32 v5, s50")
        A(f"buffer_store_dwordx2 v[4:5], v3, s[28:31], 0 offen offset:120")

def gen(o):
    g = G(o); A = g.A; lab = g.lab; C = g.C
    LDF = o.ldflags
    STF = o.stflags
    PLF = o.plflags
    vOff0, vOff1, vPhys, vNv = "v1", "v2", "v4", "v5"
    Q0, D0 = 8, 24
    g.L.append('.amdgcn_target "amdgcn-amd-amdhsa--gfx950"\n.text')
    g.L.append(f".globl {NAME}\n.p2align 8\n.type {NAME},@function\n{NAME}:")
    g.stamp(0)
    A("s_load_dwordx16 s[4:19], s[0:1], 0")
    A("s_cmp_ge_u32 s2, 256")
    A("s_cbranch_scc1 L_end")
    A("v_lshrrev_b32 v1, 6, v0")
    A("v_and_b32 v0, 63, v0")
    A("s_and_b32 s20, s2, 7")
    A("v_readfirstlane_b32 s3, v1")
    A("s_lshr_b32 s21, s2, 3")
    C("expected work list (checked against block_table / ctx_lens later; general path otherwise)")
    A("s_mul_i32 s50, s21, 498")
    A("s_add_u32 s51, s50, 498")
    A("s_lshr_b32 s50, s50, 5")
    A("s_lshr_b32 s51, s51, 5")
    A("s_and_b32 s22, s3, 3")
    A("s_lshl_b32 s23, s22, 2")
    A("s_cmp_lt_u32 s3, 4")
    A("s_cselect_b32 s52, 4, 0")
    A("s_cselect_b32 s23, s23, 0")
    A("s_add_u32 s50, s50, s23")
    A("v_bfe_u32 v6, v0, s52, 4")
    A("v_add_u32 v3, s50, v6")
    A("v_lshlrev_b32 v6, 3, v6")
    A("v_cmp_le_u32 vcc, 229, v3")
    A("v_add_u32 v4, 27, v3")
    A("s_lshl_b32 s53, s20, 9                  ; h*512")
    A("v_cndmask_b32 v4, v3, v4, vcc")
    A("v_cmp_le_u32 vcc, 303, v3")
    A("v_add_u32 v5, 54, v4")
    A("s_lshl_b32 s54, s20, 7")
    A("v_cndmask_b32 v4, v4, v5, vcc")
    A("v_cmp_le_u32 vcc, 414, v3")
    A("v_add_u32 v5, 17, v4")
    A("s_mov_b32 s26, %d" % KVBYTES)
    A("v_cndmask_b32 v4, v4, v5, vcc")
    A("v_cmp_le_u32 vcc, s51, v3")
    A("v_lshl_add_u32 v4, v4, 16, s53")
    A("v_bfrev_b32 v5, 1")
    A("v_cndmask_b32 v4, v4, v5, vcc")
    A("s_mov_b32 s27, 0x20000")
    A("s_mov_b32 s30, 0x10000000")
    A("s_mov_b32 s31, 0x20000")
    A("s_mov_b32 s55, 0")
    C("token of this lane: 2*bit3 + 4*bit4 + bit5")
    A("v_bfe_u32 v7, v0, 3, 2")
    A("v_lshrrev_b32 v3, 5, v0")
    A("v_lshl_or_b32 v7, v7, 1, v3")
    A("s_cmp_ge_u32 s3, 4")
    A("s_cbranch_scc1 L_vrole")

    vCtx, vScale, vM, vL, vB128, vTok, vTok8 = "v212", "v213", "v214", "v215", "v216", "v7", "v217"
    vLdsQ, vLdsP, vNinf, vF = "v218", "v219", "v220", "v221"
    NV = 222
    accs = [152, 168]; S0 = 184; T0 = 196
    for i in range(4): A(f"v_readlane_b32 s{64+i}, v4, {16*i}")
    C("K lane offsets: t*4096 + 64*(l>>5) + 16*(l&3)")
    A("v_bfe_u32 v1, v0, 2, 3")
    A("v_lshlrev_b32 v1, 12, v1")
    A("v_lshl_or_b32 v1, v3, 6, v1")
    A("v_and_b32 v3, 3, v0")
    A("v_lshl_or_b32 v1, v3, 4, v1")
    A("v_add_u32 v2, 0x8000, v1")
    C("Q lane offset: (q>>1)*8192 + (q&1)*512 + h*1024 + 16*(l>>3)")
    A("v_bfe_u32 v216, v0, 1, 2")
    A("v_and_b32 v3, 1, v0")
    A("v_lshlrev_b32 v3, 9, v3")
    A("v_lshl_or_b32 v3, v216, 13, v3")
    A("v_lshrrev_b32 v192, 3, v0")
    A("v_lshl_or_b32 v3, v192, 4, v3")
    A("s_lshl_b32 s56, s20, 10")
    A("v_add_u32 v3, s56, v3")
    A("v_lshlrev_b32 v192, 2, v216             ; 4*b")
    A("v_lshlrev_b32 v226, 4, v0")
    A("s_waitcnt lgkmcnt(0)")
    g.stamp(1)
    A("s_mov_b32 s24, s6")
    A("s_and_b32 s25, s7, 0xffff")
    A(f"global_load_dword {vCtx}, v192, s[12:13]")
    for i in range(4): A(f"global_load_dwordx4 v[{Q0+4*i}:{Q0+4*i+3}], v3, s[4:5] offset:{128*i}")
    A("s_load_dword s48, s[18:19], s54")
    lab("L_kround")
    for hb in range(8):
        for i in range(4):
            r = D0 + 16*hb + 4*i
            A(f"buffer_load_dwordx4 v[{r}:{r+3}], {vOff1 if hb&1 else vOff0}, s[24:27], s{64+(hb>>1)} offen offset:{128*i} {LDF}")
    for b in range(4): A(f"global_load_dwordx4 v[{T0+4*b}:{T0+4*b+3}], v226, s[10:11] offset:{1024*b}")
    g.stamp(2)
    C("first pass only: constants")
    A("s_cmp_lg_u32 s55, 0")
    A("s_cbranch_scc1 L_kconst_done")
    A("s_mov_b32 s28, s18")
    A("s_and_b32 s29, s19, 0xffff")
    A(f"v_mov_b32 {vScale}, 0x{SCALE:08x}")
    A(f"v_mov_b32 {vM}, 0x{NEG_BIG:08x}")
    A(f"v_mov_b32 {vL}, 0")
    A(f"v_mov_b32 {vNinf}, 0x{NEG_INF:08x}")
    A(f"v_add_u32 {vTok8}, 8, {vTok}")
    A("v_add_u32 v6, v6, v216")
    A("s_lshl_b32 s56, s22, 5")
    A(f"s_add_u32 s56, s56, {L_LIST}")
    A("v_add_u32 v6, s56, v6")
    A("v_lshlrev_b32 v194, 3, v216             ; 8*b")
    A("s_mov_b32 s56, 0x%08x" % (229 | 202 << 8 | 239 << 16 | 212 << 24))
    A("v_bfe_u32 v194, s56, v194, 8")
    A(f"v_lshlrev_b32 {vB128}, 7, v216")
    A(f"v_add_u32 {vB128}, 128, {vB128}         ; 128*b + 128")
    A("v_and_b32 v3, 7, v0")
    A(f"v_lshlrev_b32 {vLdsQ}, 4, v3            ; q*16")
    A("v_lshlrev_b32 v3, 1, v3")
    A("v_bfe_u32 v192, v0, 3, 1")
    A("v_and_b32 v195, 48, v0")
    A("v_or3_b32 v3, v3, v192, v195")
    A("s_lshl_b32 s56, s22, 10")
    A(f"v_lshl_add_u32 {vLdsP}, v3, 4, s56       ; P address")
    C("valid-token count of (item l>>4, sequence b) under the expected list")
    A("v_lshrrev_b32 v3, 16, v4")
    A(f"v_sub_u32 v192, v3, {vB128}")
    A("v_min_u32 v192, 128, v192")
    A("v_cmp_gt_u32 vcc, 128, v3")
    A("v_add_u32 v192, 128, v192")
    A("s_waitcnt vmcnt(40)")
    A("v_cndmask_b32 v3, v192, v3, vcc")
    A(f"v_mad_i32_i24 {vNv}, v3, -16, {vCtx}")
    lab("L_kconst_done")
    def qk_mfma(hb):
        acc = accs[hb & 1]
        A(f"s_waitcnt vmcnt({32 - 4*hb})")
        for i in range(4):
            r = D0 + 16*hb + 4*i
            c = "0" if i == 0 else f"v[{acc}:{acc+15}]"
            A(f"v_mfma_f32_32x32x16_bf16 v[{acc}:{acc+15}], v[{r}:{r+3}], v[{Q0+4*i}:{Q0+4*i+3}], {c}")
    def qk_red(hb):
        a = accs[hb & 1]; X = S0 + hb; Y = 192 + (hb & 1)
        T = [(X,0,1,5,3),(X,5,4,5,12),(X,2,3,10,3),(X,7,6,10,12),(Y,8,9,5,3),(Y,13,12,5,12),(Y,10,11,10,3),(Y,15,14,10,12)]
        for (d, own, oth, rm, bm) in T:
            A(f"v_add_f32_dpp v{d}, v{a+oth}, v{a+own} row_ror:8 row_mask:0x{rm:x} bank_mask:0x{bm:x}")
        A("s_nop 1")
        A(f"v_permlane16_swap_b32 v{X}, v{Y}")
        A("s_nop 0")
        A(f"v_add_f32 v{X}, v{X}, v{Y}")
    qk_mfma(0)
    for hb in range(8):
        if hb < 7: qk_mfma(hb+1)
        if hb == 0: A("s_nop 7")
        qk_red(hb)
    for e in range(8): A(f"v_mul_f32 v{S0+e}, v{S0+e}, {vScale}")
    C("verify the expected list (first pass)")
    A("s_cmp_lg_u32 s55, 0")
    A("s_cbranch_scc1 L_kverified")
    A("s_mov_b32 s57, 0                        ; status")
    A("s_mov_b32 s58, 0")
    A("v_lshlrev_b32 v152, 2, v0")
    A("v_add_u32 v153, 1, v152"); A("v_add_u32 v154, 2, v152"); A("v_add_u32 v155, 3, v152")
    A("v_and_b32 v156, 32, v0"); A("v_lshlrev_b32 v156, 2, v156")
    A(f"v_add_u32 v157, 15, {vCtx}"); A("v_lshrrev_b32 v157, 4, v157")
    A("v_xor_b32 v157, v157, v194")
    A("s_waitcnt vmcnt(0)")
    for b in range(4):
        for x in range(4): A(f"v_xor_b32 v{T0+4*b+x}, v{T0+4*b+x}, v{152+x}")
        if b < 3:
            for x in range(4): A(f"v_add_u32 v{152+x}, v{152+x}, v156")
        A(f"v_or3_b32 v157, v157, v{T0+4*b}, v{T0+4*b+1}")
        A(f"v_or3_b32 v157, v157, v{T0+4*b+2}, v{T0+4*b+3}")
    A("v_cmp_ne_u32 vcc, 0, v157")
    A("s_cbranch_vccnz L_slow")
    lab("L_kverified")
    C("broadcast nv of the 4 items to every lane")
    A(f"v_mov_b32 v{NV}, {vNv}"); A(f"v_mov_b32 v{NV+2}, {vNv}")
    A("s_nop 1")
    A(f"v_permlane32_swap_b32 v{NV}, v{NV+2}")
    A("s_nop 0")
    A(f"v_mov_b32 v{NV+1}, v{NV}"); A(f"v_mov_b32 v{NV+3}, v{NV+2}")
    A("s_nop 0")
    A(f"v_permlane16_swap_b32 v{NV}, v{NV+1}")
    A(f"v_permlane16_swap_b32 v{NV+2}, v{NV+3}")
    A("s_nop 0")
    for e in range(8): A(f"v_cmp_lt_i32 s[{68+2*e}:{69+2*e}], {vTok8 if e&1 else vTok}, v{NV+(e>>1)}")
    A("s_nop 0")
    for e in range(8): A(f"v_cndmask_b32 v{S0+e}, {vNinf}, v{S0+e}, s[{68+2*e}:{69+2*e}]")
    A(f"v_max3_f32 v152, v{S0}, v{S0+1}, v{S0+2}")
    A(f"v_max3_f32 v153, v{S0+3}, v{S0+4}, v{S0+5}")
    A(f"v_max3_f32 v152, v152, v{S0+6}, v{S0+7}")
    A("v_max_f32 v152, v152, v153")
    def xreduce(op, r, t):
        A("s_nop 1")
        A(f"{op}_dpp {r}, {r}, {r} row_ror:8 row_mask:0xf bank_mask:0xf")
        A(f"v_mov_b32 {t}, {r}")
        A("s_nop 1")
        A(f"v_permlane16_swap_b32 {r}, {t}")
        A("s_nop 0")
        A(f"{op} {r}, {r}, {t}")
        A(f"v_mov_b32 {t}, {r}")
        A("s_nop 1")
        A(f"v_permlane32_swap_b32 {r}, {t}")
        A("s_nop 0")
        A(f"{op} {r}, {r}, {t}")
    xreduce("v_max_f32", "v152", "v153")
    A("s_lshl_b32 s56, s22, 2")
    A(f"v_add_u32 v154, s56, {vLdsQ}")
    A(f"ds_write_b32 v154, v152 offset:{L_WMAX}")
    A("s_waitcnt lgkmcnt(0)")
    g.stamp(3)
    A("s_barrier")
    A(f"ds_read_b128 v[156:159], {vLdsQ} offset:{L_WMAX}")
    A("s_waitcnt lgkmcnt(0)")
    A("v_max3_f32 v152, v156, v157, v158")
    A(f"v_max3_f32 v152, v152, v159, {vM}")
    A(f"v_sub_f32 {vF}, {vM}, v152")
    A(f"v_mov_b32 {vM}, v152")
    for e in range(8): A(f"v_sub_f32 v{S0+e}, v{S0+e}, v152")
    A(f"v_exp_f32 {vF}, {vF}")
    for e in range(8): A(f"v_exp_f32 v{S0+e}, v{S0+e}")
    A(f"v_lshrrev_b32 v153, 2, {vLdsQ}            ; q*4")
    for n in range(4): A(f"v_cvt_pk_bf16_f32 v{156+n}, v{S0+2*n}, v{S0+2*n+1}")
    A(f"ds_write_b128 {vLdsP}, v[156:159] offset:{L_P}")
    A(f"ds_write_b32 v153, {vM} offset:{L_MROW}")
    A(f"ds_write_b32 v153, {vF} offset:{L_FROW}")
    A("v_mov_b32 v160, 0"); A("v_mov_b32 v161, s57")
    A(f"ds_write_b32 v160, v161 offset:{L_STAT}")
    A(f"v_add_f32 v152, v{S0}, v{S0+1}"); A(f"v_add_f32 v153, v{S0+2}, v{S0+3}")
    A(f"v_add_f32 v155, v{S0+4}, v{S0+5}"); A(f"v_add_f32 v162, v{S0+6}, v{S0+7}")
    A("v_add_f32 v152, v152, v153"); A("v_add_f32 v155, v155, v162"); A("v_add_f32 v152, v152, v155")
    xreduce("v_add_f32", "v152", "v153")
    A(f"ds_write_b32 v154, v152 offset:{L_WL}")
    A("s_waitcnt lgkmcnt(0)")
    g.stamp(4)
    A("s_barrier")
    g.stamp(5)
    A(f"ds_read_b128 v[156:159], {vLdsQ} offset:{L_WL}")
    A("s_waitcnt lgkmcnt(0)")
    A("v_add_f32 v156, v156, v157"); A("v_add_f32 v158, v158, v159"); A("v_add_f32 v156, v156, v158")
    A(f"v_fma_f32 {vL}, {vL}, {vF}, v156")
    A("s_cmp_lg_u32 s58, 0")
    A("s_cbranch_scc1 L_knext")
    C("launch tag from the epoch word")
    def mk_tag():
        A("s_add_u32 s49, s48, 1")
        A("s_and_b32 s56, s49, 0xff")
        A("s_mul_i32 s56, s56, 0x01010100")
        A("s_xor_b32 s59, s49, s56")
    mk_tag()
    A("s_lshl_b32 s56, s20, 8"); A("s_add_u32 s56, s56, s21"); A("s_lshl_b32 s56, s56, 4")
    A(f"s_add_u32 s56, s56, {W_ML}")
    A(f"v_lshl_add_u32 v152, {vLdsQ}, 5, s56      ; ML + ((h*8+q)*32+g)*16")
    A(f"v_mov_b32 v156, {vM}"); A(f"v_mov_b32 v157, {vL}"); A("v_mov_b32 v158, s59"); A("v_mov_b32 v159, s59")
    A("s_cmp_eq_u32 s3, 0")
    A("s_cselect_b64 exec, 0xff, 0")
    A(f"buffer_store_dwordx4 v[156:159], v152, s[28:31], 0 offen {STF}")
    A("s_mov_b64 exec, -1")
    C("consumer: row g>>2, slice g&3, 16 columns per wave")
    A("s_lshr_b32 s60, s21, 2                  ; row q")
    A("s_lshl_b32 s56, s20, 3"); A("s_add_u32 s56, s56, s60"); A("s_lshl_b32 s56, s56, 9")
    A(f"s_add_u32 s56, s56, {W_ML}")
    A("v_lshrrev_b32 v24, 2, v0")
    A("v_lshl_add_u32 v25, v24, 4, s56")
    A("s_lshl_b32 s56, s20, 5"); A("s_add_u32 s56, s56, s21"); A("s_lshl_b32 s56, s56, 13")
    A("s_lshl_b32 s61, s22, 6"); A("s_add_u32 s56, s56, s61")
    A(f"s_add_u32 s56, s56, {W_O}")
    A("v_and_b32 v27, 3, v0")
    A("v_lshlrev_b32 v26, 8, v24")
    A("v_lshl_or_b32 v26, v27, 4, v26")
    A("v_add_u32 v26, s56, v26                 ; O address")
    A("s_mov_b32 s61, 4096")
    A("s_mov_b32 s62, 0x0c0c0400")
    A("s_mov_b32 s63, 0x%x" % o.spin)
    C("out address")
    A("s_mov_b32 s36, s14"); A("s_and_b32 s37, s15, 0xffff"); A("s_mov_b32 s38, 32768"); A("s_mov_b32 s39, 0x20000")
    A("s_lshr_b32 s56, s60, 1"); A("s_lshl_b32 s56, s56, 13")
    A("s_and_b32 s40, s60, 1"); A("s_lshl_b32 s40, s40, 9"); A("s_add_u32 s56, s56, s40")
    A("s_lshl_b32 s40, s20, 10"); A("s_add_u32 s56, s56, s40")
    A("s_and_b32 s40, s21, 3"); A("s_lshl_b32 s40, s40, 7"); A("s_add_u32 s56, s56, s40")
    A("s_and_b32 s40, s22, 1"); A("s_lshl_b32 s40, s40, 6"); A("s_add_u32 s56, s56, s40")
    A("s_lshr_b32 s40, s22, 1"); A("s_lshl_b32 s40, s40, 3"); A("s_add_u32 s56, s56, s40")
    A("v_lshrrev_b32 v28, 4, v0")
    A("v_lshlrev_b32 v28, 1, v28")
    A("v_lshl_or_b32 v28, v27, 4, v28")
    A("v_add_u32 v28, s56, v28")
    for r in range(40, 48): A(f"v_mov_b32 v{r}, 0")
    lab("L_poll1")
    A(f"buffer_load_dwordx3 v[32:34], v25, s[28:31], 0 offen {PLF}")
    A(f"buffer_load_dwordx3 v[36:38], v25, s[28:31], 0 offen offset:256 {PLF}")
    A("s_sub_u32 s63, s63, 1")
    A("s_cbranch_scc1 L_end")
    A("s_waitcnt vmcnt(0)")
    A("v_cmp_ne_u32 vcc, s59, v34")
    A("v_cmp_ne_u32 s[40:41], s59, v38")
    A("s_or_b64 vcc, vcc, s[40:41]")
    if o.sleep1:
        A("s_cbranch_scc0 L_poll1_done")
        A(f"s_sleep {o.sleep1}")
        A("s_branch L_poll1")
        lab("L_poll1_done")
    else:
        A("s_cbranch_scc1 L_poll1")
    g.stamp(6)
    C("advance the epoch word once every workgroup of this head has read it")
    A("v_mov_b32 v56, s54"); A("v_mov_b32 v57, s49")
    A("s_or_b32 s56, s21, s3")
    A("s_cselect_b64 exec, 0, 1")
    A(f"buffer_store_dword v57, v56, s[28:31], 0 offen {STF}")
    A("s_mov_b64 exec, -1")
    A("v_max_f32 v29, v32, v36")
    def xred4(op, r, t):
        A("s_nop 1")
        A(f"{op}_dpp {r}, {r}, {r} row_ror:4 row_mask:0xf bank_mask:0xf")
        xreduce(op, r, t)
    xred4("v_max_f32", "v29", "v30")
    A("v_sub_f32 v32, v32, v29"); A("v_sub_f32 v36, v36, v29")
    A("v_exp_f32 v32, v32"); A("v_exp_f32 v36, v36")
    A("v_cmp_lt_f32 s[42:43], 0, v33"); A("v_cmp_lt_f32 s[44:45], 0, v37")
    A("v_mul_f32 v29, v32, v33"); A("v_fmac_f32 v29, v36, v37")
    xred4("v_add_f32", "v29", "v30")
    A("v_rcp_f32 v29, v29")
    A("s_nop 0")
    A("v_mul_f32 v32, v32, v29"); A("v_mul_f32 v36, v36, v29")
    lab("L_poll2")
    A("s_mov_b64 exec, s[42:43]")
    A(f"buffer_load_dwordx4 v[40:43], v26, s[28:31], 0 offen {PLF}")
    A("s_mov_b64 exec, s[44:45]")
    A(f"buffer_load_dwordx4 v[44:47], v26, s[28:31], s61 offen {PLF}")
    A("s_mov_b64 exec, -1")
    A("s_sub_u32 s63, s63, 1")
    A("s_cbranch_scc1 L_end")
    A("s_waitcnt vmcnt(1)")
    A("v_perm_b32 v48, v41, v40, s62"); A("v_perm_b32 v49, v43, v42, s62")
    A("v_lshl_or_b32 v48, v49, 16, v48")
    A("v_cmp_ne_u32 vcc, s59, v48")
    A("s_waitcnt vmcnt(0)")
    A("v_perm_b32 v50, v45, v44, s62"); A("v_perm_b32 v51, v47, v46, s62")
    A("s_and_b64 s[42:43], s[42:43], vcc")
    A("v_lshl_or_b32 v50, v51, 16, v50")
    A("v_cmp_ne_u32 vcc, s59, v50")
    for x in range(4): A(f"v_mul_f32 v{52+x}, v{40+x}, v32")
    A("s_and_b64 s[44:45], s[44:45], vcc")
    A("s_or_b64 s[40:41], s[42:43], s[44:45]")
    if o.sleep2:
        A("s_cbranch_scc0 L_poll2_done")
        A(f"s_sleep {o.sleep2}")
        A("s_branch L_poll2")
        lab("L_poll2_done")
    else:
        A("s_cbranch_scc1 L_poll2")
    for x in range(4): A(f"v_fmac_f32 v{52+x}, v{44+x}, v36")
    A("s_nop 0")
    A("v_permlane32_swap_b32 v52, v54")
    A("v_permlane32_swap_b32 v53, v55")
    A("s_nop 0")
    A("v_add_f32 v52, v52, v54"); A("v_add_f32 v53, v53, v55")
    A("s_nop 1")
    A("v_permlane16_swap_b32 v52, v53")
    A("s_nop 0")
    A("v_add_f32 v52, v52, v53")
    A("s_nop 1")
    A("v_add_f32_dpp v52, v52, v52 row_ror:8 row_mask:0xf bank_mask:0xf")
    A("s_mov_b64 exec, -1")
    A("s_nop 0")
    A("v_add_f32_dpp v52, v52, v52 row_ror:4 row_mask:0xf bank_mask:0xf")
    A("s_mov_b32 exec_lo, 0x000f000f")
    A("s_mov_b32 exec_hi, 0x000f000f")
    A("v_cvt_pk_bf16_f32 v52, v52, v52")
    A(f"buffer_store_short v52, v28, s[36:39], 0 offen {o.outflags}")
    g.stamp(7)
    g.stamp_out("K")
    lab("L_end")
    A("s_endpgm")

    B0, AC, P0, O0 = 152, 184, 216, 232
    lab("L_vrole")
    for i in range(16): A(f"v_readlane_b32 s{64+i}, v4, {i}")
    C("V lane offsets: tok*4096 + slice*128 + 16*(l&7)")
    A("v_and_b32 v3, 7, v0")
    A("v_lshlrev_b32 v1, 12, v7")
    A("v_lshl_or_b32 v1, v3, 4, v1")
    A("s_lshl_b32 s56, s22, 7")
    A("v_add_u32 v1, s56, v1")
    A("v_add_u32 v2, 0x8000, v1")
    A("s_waitcnt lgkmcnt(0)")
    g.stamp(1)
    A("s_mov_b32 s24, s8")
    A("s_and_b32 s25, s9, 0xffff")
    A("s_load_dword s48, s[18:19], s54")
    A("s_mov_b32 s28, s18")
    A("s_and_b32 s29, s19, 0xffff")
    for r in range(32): A(f"v_mov_b32 v{AC+r}, 0")
    A(f"v_add_u32 v6, {L_LIST}, v6")
    A("v_lshlrev_b32 v8, 4, v0")
    A("v_lshrrev_b32 v9, 3, v0")
    A("v_lshlrev_b32 v10, 15, v9")
    A("v_lshl_or_b32 v10, v3, 4, v10")
    A("s_lshl_b32 s56, s20, 18"); A("s_lshl_b32 s57, s22, 13"); A("s_add_u32 s56, s56, s57")
    A("s_lshl_b32 s57, s21, 8"); A("s_add_u32 s56, s56, s57"); A(f"s_add_u32 s56, s56, {W_O}")
    A("v_add_u32 v10, s56, v10")
    A("v_lshlrev_b32 v9, 2, v9                 ; q*4")
    A("s_mov_b32 s60, 0x05040100"); A("s_mov_b32 s61, 0x07060302")
    for x in range(4): A(f"s_mov_b32 s{40+x}, 0x0706050{x}")
    lab("L_vround")
    for k in range(32):
        if k == o.bar1:
            g.stamp(2)
            A("s_barrier")
            g.stamp(3)
        r = D0 + 4*k
        A(f"buffer_load_dwordx4 v[{r}:{r+3}], {vOff1 if k&1 else vOff0}, s[24:27], s{64+(k>>1)} offen {LDF}")
    A("s_waitcnt lgkmcnt(0)")
    mk_tag()
    A("v_mov_b32 v11, s59")
    A("v_mov_b32 v12, 0")
    g.stamp(4)
    A("s_barrier")
    g.stamp(5)
    for G_ in range(4): A(f"ds_read_b128 v[{P0+4*G_}:{P0+4*G_+3}], v8 offset:{L_P+1024*G_}")
    A(f"ds_read_b32 v13, v9 offset:{L_MROW}")
    A(f"ds_read_b32 v12, v12 offset:{L_STAT}")
    A("s_waitcnt lgkmcnt(0)")
    A("v_readfirstlane_b32 s57, v12")
    A(f"v_mov_b32 v14, 0x{NEG_BIG:08x}")
    A("v_cmp_lt_f32 s[46:47], v14, v13")
    A("s_or_b32 s56, s57, s55")
    A("s_cbranch_scc1 L_vspecial")
    lab("L_vpv")
    for G_ in range(4):
        base = D0 + 32*G_
        def perms(n, ms):
            for m in ms:
                a = base + 8*n + m; b = a + 4
                A(f"v_perm_b32 v{B0+4*(2*m)+n}, v{b}, v{a}, s60")
                A(f"v_perm_b32 v{B0+4*(2*m+1)+n}, v{b}, v{a}, s61")
        for n in range(3):
            A(f"s_waitcnt vmcnt({32 - (8*G_ + 2*n + 2)})")
            perms(n, range(4))
        A(f"s_waitcnt vmcnt({32 - (8*G_ + 8)})")
        if G_ == 3: g.stamp(6)
        def mf(j): A(f"v_mfma_f32_16x16x32_bf16 v[{AC+4*j}:{AC+4*j+3}], v[{P0+4*G_}:{P0+4*G_+3}], v[{B0+4*j}:{B0+4*j+3}], v[{AC+4*j}:{AC+4*j+3}]")
        perms(3, [0]); perms(3, [1]); mf(0); mf(1); perms(3, [2]); mf(2); mf(3); perms(3, [3]); mf(4); mf(5); mf(6); mf(7)
    lab("L_vpv_done")
    A("s_and_b32 s56, s57, 2")
    A("s_cbranch_scc1 L_vnext")
    C("sum the two token halves, tag, publish")
    def red(j):
        a = AC + 4*j
        A(f"v_add_f32_dpp v{O0+j}, v{a+1}, v{a} row_ror:8 row_mask:0xf bank_mask:0x3")
        A(f"v_add_f32_dpp v{O0+j}, v{a+2}, v{a+3} row_ror:8 row_mask:0xf bank_mask:0xc")
    for j in range(4): red(j)
    for j in range(4): A(f"v_perm_b32 v{O0+j}, v{O0+j}, v11, s{40+j}")
    for j in range(4, 8): red(j)
    A("s_mov_b64 exec, s[46:47]")
    A(f"buffer_store_dwordx4 v[{O0}:{O0+3}], v10, s[28:31], 0 offen {STF}")
    for j in range(4, 8): A(f"v_perm_b32 v{O0+j}, v{O0+j}, v11, s{40+j-4}")
    A(f"buffer_store_dwordx4 v[{O0+4}:{O0+7}], v10, s[28:31], 0 offen offset:128 {STF}")
    g.stamp(7)
    g.stamp_out("V")
    A("s_endpgm")

    lab("L_vspecial")
    A("s_and_b32 s56, s57, 1")
    A("s_cbranch_scc1 L_vpv_done")
    C("rescale accumulators by the running-max factor")
    A("v_lshrrev_b32 v14, 4, v0"); A("v_lshlrev_b32 v14, 3, v14")
    A(f"ds_read_b64 v[16:17], v14 offset:{L_FROW}")
    A("s_waitcnt lgkmcnt(0)")
    for j in range(8):
        for r in range(4): A(f"v_mul_f32 v{AC+4*j+r}, v{AC+4*j+r}, v{16+(r>>1)}")
    A("s_branch L_vpv")
    lab("L_vnext")
    A("s_waitcnt vmcnt(0)")
    A("s_lshl_b32 s56, s55, 7")
    A("v_add_u32 v14, s56, v6")
    A("ds_read_b32 v4, v14")
    A("s_add_u32 s55, s55, 1")
    A("s_waitcnt lgkmcnt(0)")
    for i in range(16): A(f"v_readlane_b32 s{64+i}, v4, {i}")
    A("s_nop 7")
    A("s_branch L_vround")

    lab("L_knext")
    A("s_lshl_b32 s56, s55, 7")
    A("v_add_u32 v152, s56, v6")
    A("v_and_b32 v153, -4, v152")
    A("ds_read_b32 v4, v153")
    A(f"ds_read_u8 {vNv}, v152 offset:4")
    A("s_add_u32 s55, s55, 1")
    A("s_sub_u32 s58, s58, 1")
    A("s_cmp_lg_u32 s58, 0"); A("s_cselect_b32 s57, 2, 0")
    A("s_waitcnt lgkmcnt(0)")
    for i in range(4): A(f"v_readlane_b32 s{64+i}, v4, {16*i}")
    A("s_nop 7")
    A("s_branch L_kround")

    lab("L_slow")
    C("general work list: one item per distinct (position, physical block)")
    TB, PK, NVv = 24, 40, 56
    A("s_load_dwordx4 s[44:47], s[12:13], 0")
    A("v_lshlrev_b32 v60, 2, v0")
    for b in range(4):
        for e in range(4): A(f"global_load_dword v{TB+4*b+e}, v60, s[10:11] offset:{1024*b+256*e}")
    A(f"v_cmp_lt_i32 vcc, 0, {vCtx}")
    A("s_nop 1")
    A(f"v_cndmask_b32 {vScale}, 0, {vScale}, vcc")
    A("s_waitcnt vmcnt(0) lgkmcnt(0)")
    for b in range(4):
        A(f"s_cmp_le_i32 s{44+b}, 0"); A(f"s_cselect_b32 s{44+b}, 4096, s{44+b}"); A(f"s_min_i32 s{44+b}, s{44+b}, 4096")
    for e in range(4):
        A(f"v_lshlrev_b32 v61, 4, v0"); A(f"v_add_u32 v61, {1024*e}, v61")
        for b in range(4):
            t = TB+4*b+e
            A(f"v_cmp_gt_i32 vcc, 0, v{t}"); A(f"v_add_u32 v62, 640, v{t}"); A("s_nop 0"); A(f"v_cndmask_b32 v{t}, v{t}, v62, vcc")
            A(f"v_sub_u32 v{NVv+b}, s{44+b}, v61"); A(f"v_med3_i32 v{NVv+b}, v{NVv+b}, 0, 16")
            A(f"v_cmp_lt_i32 vcc, 0, v{NVv+b}"); A(f"v_lshlrev_b32 v{NVv+b}, {8*b}, v{NVv+b}"); A("s_nop 0")
            A(f"v_cndmask_b32 v{t}, {-1-b}, v{t}, vcc")
        for b in range(4):
            t = TB+4*b+e; p = PK+4*b+e
            A(f"v_mov_b32 v{p}, v{NVv+b}")
            for b2 in range(b+1, 4):
                A(f"v_cmp_eq_u32 vcc, v{t}, v{TB+4*b2+e}"); A("s_nop 1"); A(f"v_cndmask_b32 v62, 0, v{NVv+b2}, vcc"); A(f"v_or_b32 v{p}, v{p}, v62")
            for b2 in range(b):
                A(f"v_cmp_ne_u32 vcc, v{t}, v{TB+4*b2+e}"); A("s_nop 1"); A(f"v_cndmask_b32 v{p}, 0, v{p}, vcc")
    A("s_mov_b32 s56, 0")
    for k in range(16):
        A(f"v_cmp_ne_u32 vcc, 0, v{PK+k}"); A(f"s_mov_b32 s{68+k}, s56"); A("s_bcnt1_i32_b64 s40, vcc"); A("s_add_u32 s56, s56, s40")
    A("s_mul_i32 s40, s21, s56"); A("s_add_u32 s41, s40, s56"); A("s_lshr_b32 s40, s40, 5"); A("s_lshr_b32 s41, s41, 5")
    A("s_sub_u32 s41, s41, s40")
    A("v_and_b32 v61, 31, v0"); A("v_lshlrev_b32 v61, 3, v61"); A("v_bfrev_b32 v62, 1"); A("v_mov_b32 v63, 0")
    A(f"ds_write_b64 v61, v[62:63] offset:{L_LIST}")
    for k in range(16):
        A(f"v_cmp_ne_u32 s[42:43], 0, v{PK+k}")
        A(f"s_sub_u32 s56, s{68+k}, s40")
        A(f"v_lshl_add_u32 v62, v{TB+k}, 16, s53")
        A(f"v_mov_b32 v63, v{PK+k}")
        A("v_mbcnt_lo_u32_b32 v61, s42, 0"); A("v_mbcnt_hi_u32_b32 v61, s43, v61")
        A("v_add_u32 v61, s56, v61")
        A("v_cmp_gt_u32 vcc, s41, v61")
        A("v_lshlrev_b32 v61, 3, v61")
        A("s_and_b64 exec, vcc, s[42:43]")
        A(f"ds_write_b64 v61, v[62:63] offset:{L_LIST}")
        A("s_mov_b64 exec, -1")
    A("s_add_u32 s58, s41, 15"); A("s_lshr_b32 s58, s58, 4")
    A(f"v_mov_b32 {vNv}, 0")
    A("s_cmp_lg_u32 s58, 0"); A("s_cselect_b32 s57, 3, 1")
    A("s_branch L_kverified")
    txt = "\n".join(x for x in g.L if x is not None)
    return txt

KD = f"""
.section .rodata,"a"
.p2align 6
.amdhsa_kernel {NAME}
  .amdhsa_next_free_vgpr 256
  .amdhsa_next_free_sgpr 102
  .amdhsa_accum_offset 256
  .amdhsa_group_segment_fixed_size 0
  .amdhsa_kernarg_size 64
  .amdhsa_user_sgpr_count 2
  .amdhsa_user_sgpr_kernarg_segment_ptr 1
  .amdhsa_system_sgpr_workgroup_id_x 1
.end_amdhsa_kernel
"""
def parser():
    p = argparse.ArgumentParser()
    p.add_argument("--stamps", type=int, default=0)
    p.add_argument("--ldflags", default="nt")
    p.add_argument("--stflags", default="sc1")
    p.add_argument("--plflags", default="sc1")
    p.add_argument("--outflags", default="")
    p.add_argument("--bar1", type=int, default=24)
    p.add_argument("--sleep1", type=int, default=0)
    p.add_argument("--sleep2", type=int, default=0)
    p.add_argument("--spin", type=lambda x: int(x, 0), default=0x200000)
    p.add_argument("--probe", default="")
    p.add_argument("--probewg", type=int, default=-1)
    p.add_argument("-o", default="out.s")
    return p
if __name__ == "__main__":
    o = parser().parse_args()
    open(o.o, "w").write(HEADER + gen(o) + KD)
```

```python
import sys, os, argparse
NAME = "standalone__paged_block_table_kv_radixattention__decode_kernel"

HEADER = """; Kernarg layout for this problem (64 bytes, ptrs only, base s[0:1]):
; @launch grid=(256,1,1) block=(512,1,1) lds=8192
"""

L_P, L_WMAX, L_WL, L_MROW, L_FROW, L_STAT, L_LIST = 0, 4096, 4224, 4352, 4384, 4416, 4480
W_CEN, W_ML, W_O = 2048, 4096, 524288
KVBYTES = 41943040
NEG_BIG = 0xf149f2ca
NEG_INF = 0xff800000
import struct, math
def f2u(f): return struct.unpack("<I", struct.pack("<f", f))[0]
SCALE = f2u(0.0625 * math.log2(math.e))

class G:
    def __init__(s, opt):
        s.L = []; s.o = opt
    def A(s, x): s.L.append("    " + x)
    def lab(s, x): s.L.append(x + ":")
    def C(s, x): s.L.append("    ; " + x)
    def stamp(s, i):
        if s.o.stamps: s.A(f"s_memrealtime s[{84+2*i}:{85+2*i}]")
    def stamp_out(s, role):
        if not s.o.stamps: return
        A = s.A
        if s.o.probe:
            pr, pi = s.o.probe[0], int(s.o.probe[1:])
            if pr != role: return
            A("s_waitcnt lgkmcnt(0)")
            if s.o.probewg >= 0:
                A(f"s_cmp_lg_u32 s2, {s.o.probewg}"); A(f"s_cbranch_scc1 L_pe{role}")
            A(f"s_sub_u32 s50, s{84+2*pi}, s84")
            A("s_mul_i32 s50, s50, 10")
            A("s_min_u32 s50, s50, 100000")
            A("s_memrealtime s[84:85]")
            A("s_waitcnt lgkmcnt(0)")
            s.lab(f"L_pl{role}")
            A("s_memrealtime s[86:87]")
            A("s_waitcnt lgkmcnt(0)")
            A("s_sub_u32 s51, s86, s84")
            A("s_cmp_lt_u32 s51, s50")
            A(f"s_cbranch_scc1 L_pl{role}")
            s.lab(f"L_pe{role}")
            return
        A("s_waitcnt lgkmcnt(0)")
        A("s_mov_b64 exec, -1")
        A("s_lshl_b32 s50, s2, 3"); A("s_add_u32 s50, s50, s3"); A("s_lshl_b32 s50, s50, 7")
        A("s_add_u32 s50, s50, 0x8000000")
        A("v_mov_b32 v3, s50")
        for i in range(8):
            A(f"v_mov_b32 v4, s{84+2*i}"); A(f"v_mov_b32 v5, s{85+2*i}")
            A(f"buffer_store_dwordx2 v[4:5], v3, s[28:31], 0 offen offset:{8*i}")
            A("s_nop 1")
        A("s_getreg_b32 s50, hwreg(HW_REG_XCC_ID)"); A("s_getreg_b32 s51, hwreg(HW_REG_HW_ID)")
        A("v_mov_b32 v4, s51"); A("v_mov_b32 v5, s50")
        A(f"buffer_store_dwordx2 v[4:5], v3, s[28:31], 0 offen offset:120")

def gen(o):
    g = G(o); A = g.A; lab = g.lab; C = g.C
    LDF = o.ldflags
    STF = o.stflags
    PLF = o.plflags
    vOff0, vOff1, vPhys, vNv = "v1", "v2", "v4", "v5"
    Q0, D0 = 8, 24
    g.L.append('.amdgcn_target "amdgcn-amd-amdhsa--gfx950"\n.text')
    g.L.append(f".globl {NAME}\n.p2align 8\n.type {NAME},@function\n{NAME}:")
    g.stamp(0)
    A("s_load_dwordx16 s[4:19], s[0:1], 0")
    A("s_cmp_ge_u32 s2, 256")
    A("s_cbranch_scc1 L_end")
    A("v_lshrrev_b32 v1, 6, v0")
    A("v_and_b32 v0, 63, v0")
    A("s_and_b32 s20, s2, 7")
    A("v_readfirstlane_b32 s3, v1")
    A("s_lshr_b32 s21, s2, 3")
    C("expected work list (checked against block_table / ctx_lens later; general path otherwise)")
    A("s_mul_i32 s50, s21, 498")
    A("s_add_u32 s51, s50, 498")
    A("s_lshr_b32 s50, s50, 5")
    A("s_lshr_b32 s51, s51, 5")
    A("s_and_b32 s22, s3, 3")
    A("s_lshl_b32 s23, s22, 2")
    A("s_cmp_lt_u32 s3, 4")
    A("s_cselect_b32 s52, 4, 0")
    A("s_cselect_b32 s23, s23, 0")
    A("s_add_u32 s50, s50, s23")
    A("v_bfe_u32 v6, v0, s52, 4")
    A("v_add_u32 v3, s50, v6")
    A("v_lshlrev_b32 v6, 3, v6")
    A("v_cmp_le_u32 vcc, 229, v3")
    A("v_add_u32 v4, 27, v3")
    A("s_lshl_b32 s53, s20, 9                  ; h*512")
    A("v_cndmask_b32 v4, v3, v4, vcc")
    A("v_cmp_le_u32 vcc, 303, v3")
    A("v_add_u32 v5, 54, v4")
    A("s_lshl_b32 s54, s20, 7")
    A("v_cndmask_b32 v4, v4, v5, vcc")
    A("v_cmp_le_u32 vcc, 414, v3")
    A("v_add_u32 v5, 17, v4")
    A("s_mov_b32 s26, %d" % KVBYTES)
    A("v_cndmask_b32 v4, v4, v5, vcc")
    A("v_cmp_le_u32 vcc, s51, v3")
    A("v_lshl_add_u32 v4, v4, 16, s53")
    A("v_bfrev_b32 v5, 1")
    A("v_cndmask_b32 v4, v4, v5, vcc")
    A("s_mov_b32 s27, 0x20000")
    A("s_mov_b32 s30, 0x10000000")
    A("s_mov_b32 s31, 0x20000")
    A("s_mov_b32 s55, 0")
    C("token of this lane: 2*bit3 + 4*bit4 + bit5")
    A("v_bfe_u32 v7, v0, 3, 2")
    A("v_lshrrev_b32 v3, 5, v0")
    A("v_lshl_or_b32 v7, v7, 1, v3")
    A("s_cmp_ge_u32 s3, 4")
    A("s_cbranch_scc1 L_vrole")

    vCtx, vScale, vM, vL, vB128, vTok, vTok8 = "v212", "v213", "v214", "v215", "v216", "v7", "v217"
    vLdsQ, vLdsP, vNinf, vF = "v218", "v219", "v220", "v221"
    NV = 222
    accs = [152, 168]; S0 = 184; T0 = 196
    for i in range(4): A(f"v_readlane_b32 s{64+i}, v4, {16*i}")
    C("K lane offsets: t*4096 + 64*(l>>5) + 16*(l&3)")
    A("v_bfe_u32 v1, v0, 2, 3")
    A("v_lshlrev_b32 v1, 12, v1")
    A("v_lshl_or_b32 v1, v3, 6, v1")
    A("v_and_b32 v3, 3, v0")
    A("v_lshl_or_b32 v1, v3, 4, v1")
    A("v_add_u32 v2, 0x8000, v1")
    C("Q lane offset: (q>>1)*8192 + (q&1)*512 + h*1024 + 16*(l>>3)")
    A("v_bfe_u32 v216, v0, 1, 2")
    A("v_and_b32 v3, 1, v0")
    A("v_lshlrev_b32 v3, 9, v3")
    A("v_lshl_or_b32 v3, v216, 13, v3")
    A("v_lshrrev_b32 v192, 3, v0")
    A("v_lshl_or_b32 v3, v192, 4, v3")
    A("s_lshl_b32 s56, s20, 10")
    A("v_add_u32 v228, s56, v3")
    A("v_lshlrev_b32 v227, 2, v216             ; 4*b")
    A("v_lshlrev_b32 v226, 4, v0")
    A("v_and_b32 v232, 31, v0")
    A("v_lshlrev_b32 v232, 2, v232")
    A("s_waitcnt lgkmcnt(0)")
    g.stamp(1)
    A("s_mov_b32 s24, s6")
    A("s_and_b32 s25, s7, 0xffff")
    A("s_load_dword s48, s[18:19], s54")
    def qloads():
        A(f"global_load_dword {vCtx}, v227, s[12:13] {o.qflags}")
        for i in range(4): A(f"global_load_dwordx4 v[{Q0+4*i}:{Q0+4*i+3}], v228, s[4:5] offset:{128*i} {o.qflags}")
    def mk_tag():
        C("launch tag from the epoch word")
        A("s_add_u32 s49, s48, 1")
        A("s_and_b32 s56, s49, 0xff")
        A("s_mul_i32 s56, s56, 0x01010100")
        A("s_xor_b32 s59, s49, s56")
    A("s_mov_b32 s28, s18")
    A("s_and_b32 s29, s19, 0xffff")
    lab("L_kround")
    for hb in range(9):
        if hb == o.cpos:
            A("s_getreg_b32 s47, hwreg(HW_REG_XCC_ID, 0, 3)")
            A("s_lshl_b32 s47, s47, 29")
            A("s_lshl_b32 s46, s21, 2")
            A("s_add_u32 s46, s46, s54")
            A("v_mov_b32 v231, s46")
            A("s_waitcnt lgkmcnt(0)")
            mk_tag()
            if o.xcc:
                C("census entry: tag + XCD of this workgroup")
                A("s_xor_b32 s47, s47, s59")
                A("v_mov_b32 v230, s47")
                A("s_cmp_eq_u32 s3, 0")
                A("s_cselect_b64 exec, 1, 0")
                A(f"buffer_store_dword v230, v231, s[28:31], 0 offen offset:{W_CEN}")
                A("s_mov_b64 exec, -1")
        if hb == o.qpos: qloads()
        if hb == 8: break
        for i in range(4):
            r = D0 + 16*hb + 4*i
            A(f"buffer_load_dwordx4 v[{r}:{r+3}], {vOff1 if hb&1 else vOff0}, s[24:27], s{64+(hb>>1)} offen offset:{128*i} {LDF}")
    NT = 0 if o.notab else 4
    for b in range(NT): A(f"global_load_dwordx4 v[{T0+4*b}:{T0+4*b+3}], v226, s[10:11] offset:{1024*b} {o.qflags}")
    NTV = NT
    if o.xcc:
        A(f"buffer_load_dword v229, v232, s[28:31], s54 offen offset:{W_CEN} sc1")
        NT += 1
    g.stamp(2)
    if o.bar0: A("s_barrier")
    C("first pass only: constants")
    A("s_cmp_lg_u32 s55, 0")
    A("s_cbranch_scc1 L_kconst_done")
    A(f"v_mov_b32 {vScale}, 0x{SCALE:08x}")
    A(f"v_mov_b32 {vM}, 0x{NEG_BIG:08x}")
    A(f"v_mov_b32 {vL}, 0")
    A(f"v_mov_b32 {vNinf}, 0x{NEG_INF:08x}")
    A(f"v_add_u32 {vTok8}, 8, {vTok}")
    A("v_add_u32 v6, v6, v216")
    A("s_lshl_b32 s56, s22, 5")
    A(f"s_add_u32 s56, s56, {L_LIST}")
    A("v_add_u32 v6, s56, v6")
    A("v_lshlrev_b32 v194, 3, v216             ; 8*b")
    A("s_mov_b32 s56, 0x%08x" % (229 | 202 << 8 | 239 << 16 | 212 << 24))
    A("v_bfe_u32 v194, s56, v194, 8")
    A(f"v_lshlrev_b32 {vB128}, 7, v216")
    A(f"v_add_u32 {vB128}, 128, {vB128}         ; 128*b + 128")
    A("v_and_b32 v3, 7, v0")
    A(f"v_lshlrev_b32 {vLdsQ}, 4, v3            ; q*16")
    A("v_lshlrev_b32 v3, 1, v3")
    A("v_bfe_u32 v192, v0, 3, 1")
    A("v_and_b32 v195, 48, v0")
    A("v_or3_b32 v3, v3, v192, v195")
    A("s_lshl_b32 s56, s22, 10")
    A(f"v_lshl_add_u32 {vLdsP}, v3, 4, s56       ; P address")
    C("valid-token count of (item l>>4, sequence b) under the expected list")
    A("v_lshrrev_b32 v3, 16, v4")
    A(f"v_sub_u32 v192, v3, {vB128}")
    A("v_min_u32 v192, 128, v192")
    A("v_cmp_gt_u32 vcc, 128, v3")
    A("v_add_u32 v192, 128, v192")
    A(f"s_waitcnt vmcnt({4 + 4*(8-o.qpos) + NT})")
    A("v_cndmask_b32 v3, v192, v3, vcc")
    A(f"v_mad_i32_i24 {vNv}, v3, -16, {vCtx}")
    lab("L_kconst_done")
    def qk_mfma(hb):
        acc = accs[hb & 1]
        A(f"s_waitcnt vmcnt({min(4*(8-o.qpos), 28 - 4*hb) + NT})")
        for i in range(4):
            r = D0 + 16*hb + 4*i
            c = "0" if i == 0 else f"v[{acc}:{acc+15}]"
            A(f"v_mfma_f32_32x32x16_bf16 v[{acc}:{acc+15}], v[{r}:{r+3}], v[{Q0+4*i}:{Q0+4*i+3}], {c}")
    def qk_red(hb):
        a = accs[hb & 1]; X = S0 + hb; Y = 192 + (hb & 1)
        T = [(X,0,1,5,3),(X,5,4,5,12),(X,2,3,10,3),(X,7,6,10,12),(Y,8,9,5,3),(Y,13,12,5,12),(Y,10,11,10,3),(Y,15,14,10,12)]
        for (d, own, oth, rm, bm) in T:
            A(f"v_add_f32_dpp v{d}, v{a+oth}, v{a+own} row_ror:8 row_mask:0x{rm:x} bank_mask:0x{bm:x}")
        A("s_nop 1")
        A(f"v_permlane16_swap_b32 v{X}, v{Y}")
        A("s_nop 0")
        A(f"v_add_f32 v{X}, v{X}, v{Y}")
    qk_mfma(0)
    for hb in range(8):
        if hb < 7: qk_mfma(hb+1)
        if hb == 0: A("s_nop 7")
        qk_red(hb)
    for e in range(8): A(f"v_mul_f32 v{S0+e}, v{S0+e}, {vScale}")
    C("verify the expected list (first pass)")
    A("s_cmp_lg_u32 s55, 0")
    A("s_cbranch_scc1 L_kverified")
    A("s_mov_b32 s57, 0                        ; status")
    A("s_mov_b32 s58, 0")
    A("v_lshlrev_b32 v152, 2, v0")
    A("v_add_u32 v153, 1, v152"); A("v_add_u32 v154, 2, v152"); A("v_add_u32 v155, 3, v152")
    A("v_and_b32 v156, 32, v0"); A("v_lshlrev_b32 v156, 2, v156")
    A(f"v_add_u32 v157, 15, {vCtx}"); A("v_lshrrev_b32 v157, 4, v157")
    A("v_xor_b32 v157, v157, v194")
    A("s_waitcnt vmcnt(0)")
    for b in range(NTV):
        for x in range(4): A(f"v_xor_b32 v{T0+4*b+x}, v{T0+4*b+x}, v{152+x}")
        if b < 3:
            for x in range(4): A(f"v_add_u32 v{152+x}, v{152+x}, v156")
        A(f"v_or3_b32 v157, v157, v{T0+4*b}, v{T0+4*b+1}")
        A(f"v_or3_b32 v157, v157, v{T0+4*b+2}, v{T0+4*b+3}")
    A("v_cmp_ne_u32 vcc, 0, v157")
    A("s_cbranch_vccnz L_slow")
    lab("L_kverified")
    if o.xcc:
        A("s_waitcnt vmcnt(0)")
        A("v_cmp_ne_u32 vcc, v229, v230")
        A("s_cmp_eq_u64 vcc, 0")
        A("s_cselect_b32 s44, 4, 0")
        A("s_or_b32 s57, s57, s44")
    C("broadcast nv of the 4 items to every lane")
    A(f"v_mov_b32 v{NV}, {vNv}"); A(f"v_mov_b32 v{NV+2}, {vNv}")
    A("s_nop 1")
    A(f"v_permlane32_swap_b32 v{NV}, v{NV+2}")
    A("s_nop 0")
    A(f"v_mov_b32 v{NV+1}, v{NV}"); A(f"v_mov_b32 v{NV+3}, v{NV+2}")
    A("s_nop 0")
    A(f"v_permlane16_swap_b32 v{NV}, v{NV+1}")
    A(f"v_permlane16_swap_b32 v{NV+2}, v{NV+3}")
    A("s_nop 0")
    for e in range(8): A(f"v_cmp_lt_i32 s[{68+2*e}:{69+2*e}], {vTok8 if e&1 else vTok}, v{NV+(e>>1)}")
    A("s_nop 0")
    for e in range(8): A(f"v_cndmask_b32 v{S0+e}, {vNinf}, v{S0+e}, s[{68+2*e}:{69+2*e}]")
    A(f"v_max3_f32 v152, v{S0}, v{S0+1}, v{S0+2}")
    A(f"v_max3_f32 v153, v{S0+3}, v{S0+4}, v{S0+5}")
    A(f"v_max3_f32 v152, v152, v{S0+6}, v{S0+7}")
    A("v_max_f32 v152, v152, v153")
    def xreduce(op, r, t):
        A("s_nop 1")
        A(f"{op}_dpp {r}, {r}, {r} row_ror:8 row_mask:0xf bank_mask:0xf")
        A(f"v_mov_b32 {t}, {r}")
        A("s_nop 1")
        A(f"v_permlane16_swap_b32 {r}, {t}")
        A("s_nop 0")
        A(f"{op} {r}, {r}, {t}")
        A(f"v_mov_b32 {t}, {r}")
        A("s_nop 1")
        A(f"v_permlane32_swap_b32 {r}, {t}")
        A("s_nop 0")
        A(f"{op} {r}, {r}, {t}")
    xreduce("v_max_f32", "v152", "v153")
    A("s_lshl_b32 s56, s22, 2")
    A(f"v_add_u32 v154, s56, {vLdsQ}")
    A(f"ds_write_b32 v154, v152 offset:{L_WMAX}")
    A("s_waitcnt lgkmcnt(0)")
    g.stamp(3)
    A("s_barrier")
    A(f"ds_read_b128 v[156:159], {vLdsQ} offset:{L_WMAX}")
    A("s_waitcnt lgkmcnt(0)")
    A("v_max3_f32 v152, v156, v157, v158")
    A(f"v_max3_f32 v152, v152, v159, {vM}")
    A(f"v_sub_f32 {vF}, {vM}, v152")
    A(f"v_mov_b32 {vM}, v152")
    for e in range(8): A(f"v_sub_f32 v{S0+e}, v{S0+e}, v152")
    A(f"v_exp_f32 {vF}, {vF}")
    for e in range(8): A(f"v_exp_f32 v{S0+e}, v{S0+e}")
    A(f"v_lshrrev_b32 v153, 2, {vLdsQ}            ; q*4")
    for n in range(4): A(f"v_cvt_pk_bf16_f32 v{156+n}, v{S0+2*n}, v{S0+2*n+1}")
    A(f"ds_write_b128 {vLdsP}, v[156:159] offset:{L_P}")
    A(f"ds_write_b32 v153, {vM} offset:{L_MROW}")
    A(f"ds_write_b32 v153, {vF} offset:{L_FROW}")
    A("v_mov_b32 v160, 0"); A("v_mov_b32 v161, s57")
    A(f"ds_write_b32 v160, v161 offset:{L_STAT}")
    A(f"v_add_f32 v152, v{S0}, v{S0+1}"); A(f"v_add_f32 v153, v{S0+2}, v{S0+3}")
    A(f"v_add_f32 v155, v{S0+4}, v{S0+5}"); A(f"v_add_f32 v162, v{S0+6}, v{S0+7}")
    A("v_add_f32 v152, v152, v153"); A("v_add_f32 v155, v155, v162"); A("v_add_f32 v152, v152, v155")
    xreduce("v_add_f32", "v152", "v153")
    A(f"ds_write_b32 v154, v152 offset:{L_WL}")
    A("s_waitcnt lgkmcnt(0)")
    g.stamp(4)
    A("s_barrier")
    g.stamp(5)
    A(f"ds_read_b128 v[156:159], {vLdsQ} offset:{L_WL}")
    A("s_waitcnt lgkmcnt(0)")
    A("v_add_f32 v156, v156, v157"); A("v_add_f32 v158, v158, v159"); A("v_add_f32 v156, v156, v158")
    A(f"v_fma_f32 {vL}, {vL}, {vF}, v156")
    A("s_cmp_lg_u32 s58, 0")
    A("s_cbranch_scc1 L_knext")
    A("s_lshl_b32 s56, s20, 8"); A("s_add_u32 s56, s56, s21"); A("s_lshl_b32 s56, s56, 7")
    A(f"s_add_u32 s56, s56, {W_ML}")
    A("v_lshrrev_b32 v153, 3, v0")
    A("v_lshl_add_u32 v153, v153, 4, s56")
    A(f"v_lshl_add_u32 v152, {vLdsQ}, 8, v153     ; ML + ((h*8+q)*32+g)*128 + 16*(l>>3)")
    A(f"v_mov_b32 v156, {vM}"); A(f"v_mov_b32 v157, {vL}"); A("v_mov_b32 v158, s59"); A("v_mov_b32 v159, s59")
    A("s_cmp_eq_u32 s3, 0")
    A("s_cselect_b64 s[44:45], -1, 0")
    if o.xcc:
        A("s_bitcmp1_b32 s57, 2")
        A("s_cselect_b64 exec, s[44:45], 0")
        A(f"buffer_store_dwordx4 v[156:159], v152, s[28:31], 0 offen")
        A("s_cselect_b64 exec, 0, s[44:45]")
    else:
        A("s_mov_b64 exec, s[44:45]")
    A(f"buffer_store_dwordx4 v[156:159], v152, s[28:31], 0 offen {STF}")
    A("s_mov_b64 exec, -1")
    C("consumer: row g>>2, slice g&3, 16 columns per wave")
    A("s_lshr_b32 s60, s21, 2                  ; row q")
    A("s_lshl_b32 s56, s20, 3"); A("s_add_u32 s56, s56, s60"); A("s_lshl_b32 s56, s56, 12")
    A(f"s_add_u32 s56, s56, {W_ML}")
    A("v_lshrrev_b32 v24, 2, v0")
    A("v_lshl_add_u32 v25, v24, 7, s56")
    A("s_lshl_b32 s56, s20, 5"); A("s_add_u32 s56, s56, s21"); A("s_lshl_b32 s56, s56, 13")
    A("s_lshl_b32 s61, s22, 6"); A("s_add_u32 s56, s56, s61")
    A(f"s_add_u32 s56, s56, {W_O}")
    A("v_and_b32 v27, 3, v0")
    A("v_lshlrev_b32 v26, 8, v24")
    A("v_lshl_or_b32 v26, v27, 4, v26")
    A("v_add_u32 v26, s56, v26                 ; O address")
    A("s_mov_b32 s61, 4096")
    A("s_mov_b32 s62, 0x0c0c0400")
    A("s_mov_b32 s63, 0x%x" % o.spin)
    C("out address")
    A("s_mov_b32 s36, s14"); A("s_and_b32 s37, s15, 0xffff"); A("s_mov_b32 s38, 32768"); A("s_mov_b32 s39, 0x20000")
    A("s_lshr_b32 s56, s60, 1"); A("s_lshl_b32 s56, s56, 13")
    A("s_and_b32 s40, s60, 1"); A("s_lshl_b32 s40, s40, 9"); A("s_add_u32 s56, s56, s40")
    A("s_lshl_b32 s40, s20, 10"); A("s_add_u32 s56, s56, s40")
    A("s_and_b32 s40, s21, 3"); A("s_lshl_b32 s40, s40, 7"); A("s_add_u32 s56, s56, s40")
    A("s_and_b32 s40, s22, 1"); A("s_lshl_b32 s40, s40, 6"); A("s_add_u32 s56, s56, s40")
    A("s_lshr_b32 s40, s22, 1"); A("s_lshl_b32 s40, s40, 3"); A("s_add_u32 s56, s56, s40")
    A("v_lshrrev_b32 v28, 4, v0")
    A("v_lshlrev_b32 v28, 1, v28")
    A("v_lshl_or_b32 v28, v27, 4, v28")
    A("v_add_u32 v28, s56, v28")
    for r in range(40, 48): A(f"v_mov_b32 v{r}, 0")
    A("s_barrier")
    if o.sleep0: A(f"s_sleep {o.sleep0}")
    lab("L_poll1")
    A(f"buffer_load_dwordx3 v[32:34], v25, s[28:31], 0 offen {PLF}")
    A(f"buffer_load_dwordx3 v[36:38], v25, s[28:31], 0 offen offset:2048 {PLF}")
    A("s_sub_u32 s63, s63, 1")
    A("s_cbranch_scc1 L_end")
    A("s_waitcnt vmcnt(0)")
    A("v_cmp_ne_u32 vcc, s59, v34")
    A("v_cmp_ne_u32 s[40:41], s59, v38")
    A("s_or_b64 vcc, vcc, s[40:41]")
    if o.sleep1:
        A("s_cbranch_scc0 L_poll1_done")
        A(f"s_sleep {o.sleep1}")
        A("s_branch L_poll1")
        lab("L_poll1_done")
    else:
        A("s_cbranch_scc1 L_poll1")
    g.stamp(6)
    C("advance the epoch word once every workgroup of this head has read it")
    A("v_mov_b32 v56, s54"); A("v_mov_b32 v57, s49")
    A("s_or_b32 s56, s21, s3")
    A("s_cselect_b64 exec, 0, 1")
    A(f"buffer_store_dword v57, v56, s[28:31], 0 offen {STF}")
    A("s_mov_b64 exec, -1")
    A("v_max_f32 v29, v32, v36")
    def xred4(op, r, t):
        A("s_nop 1")
        A(f"{op}_dpp {r}, {r}, {r} row_ror:4 row_mask:0xf bank_mask:0xf")
        xreduce(op, r, t)
    xred4("v_max_f32", "v29", "v30")
    A("v_sub_f32 v32, v32, v29"); A("v_sub_f32 v36, v36, v29")
    A("v_exp_f32 v32, v32"); A("v_exp_f32 v36, v36")
    A("v_cmp_lt_f32 s[42:43], 0, v33"); A("v_cmp_lt_f32 s[44:45], 0, v37")
    A("v_mul_f32 v29, v32, v33"); A("v_fmac_f32 v29, v36, v37")
    xred4("v_add_f32", "v29", "v30")
    A("v_rcp_f32 v29, v29")
    A("s_nop 0")
    A("v_mul_f32 v32, v32, v29"); A("v_mul_f32 v36, v36, v29")
    if o.bar3 in ("pre", "post"): A("s_barrier")
    lab("L_poll2")
    A("s_mov_b64 exec, s[42:43]")
    A(f"buffer_load_dwordx4 v[40:43], v26, s[28:31], 0 offen {PLF}")
    A("s_mov_b64 exec, s[44:45]")
    A(f"buffer_load_dwordx4 v[44:47], v26, s[28:31], s61 offen {PLF}")
    A("s_mov_b64 exec, -1")
    A("s_sub_u32 s63, s63, 1")
    A("s_cbranch_scc1 L_end")
    A("s_waitcnt vmcnt(1)")
    A("v_perm_b32 v48, v41, v40, s62"); A("v_perm_b32 v49, v43, v42, s62")
    A("v_lshl_or_b32 v48, v49, 16, v48")
    A("v_cmp_ne_u32 vcc, s59, v48")
    A("s_waitcnt vmcnt(0)")
    A("v_perm_b32 v50, v45, v44, s62"); A("v_perm_b32 v51, v47, v46, s62")
    A("s_and_b64 s[42:43], s[42:43], vcc")
    A("v_lshl_or_b32 v50, v51, 16, v50")
    A("v_cmp_ne_u32 vcc, s59, v50")
    for x in range(4): A(f"v_mul_f32 v{52+x}, v{40+x}, v32")
    A("s_and_b64 s[44:45], s[44:45], vcc")
    A("s_or_b64 s[40:41], s[42:43], s[44:45]")
    if o.sleep2:
        A("s_cbranch_scc0 L_poll2_done")
        A(f"s_sleep {o.sleep2}")
        A("s_branch L_poll2")
        lab("L_poll2_done")
    else:
        A("s_cbranch_scc1 L_poll2")
    for x in range(4): A(f"v_fmac_f32 v{52+x}, v{44+x}, v36")
    A("s_nop 0")
    A("v_permlane32_swap_b32 v52, v54")
    A("v_permlane32_swap_b32 v53, v55")
    A("s_nop 0")
    A("v_add_f32 v52, v52, v54"); A("v_add_f32 v53, v53, v55")
    A("s_nop 1")
    A("v_permlane16_swap_b32 v52, v53")
    A("s_nop 0")
    A("v_add_f32 v52, v52, v53")
    A("s_nop 1")
    A("v_add_f32_dpp v52, v52, v52 row_ror:8 row_mask:0xf bank_mask:0xf")
    A("s_mov_b64 exec, -1")
    A("s_nop 0")
    A("v_add_f32_dpp v52, v52, v52 row_ror:4 row_mask:0xf bank_mask:0xf")
    A("s_mov_b32 exec_lo, 0x000f000f")
    A("s_mov_b32 exec_hi, 0x000f000f")
    A("v_cvt_pk_bf16_f32 v52, v52, v52")
    A(f"buffer_store_short v52, v28, s[36:39], 0 offen {o.outflags}")
    g.stamp(7)
    g.stamp_out("K")
    lab("L_end")
    A("s_endpgm")

    B0, AC, P0, O0 = 152, 184, 216, 232
    lab("L_vrole")
    for i in range(16): A(f"v_readlane_b32 s{64+i}, v4, {i}")
    C("V lane offsets: tok*4096 + slice*128 + 16*(l&7)")
    A("v_and_b32 v3, 7, v0")
    A("v_lshlrev_b32 v1, 12, v7")
    A("v_lshl_or_b32 v1, v3, 4, v1")
    A("s_lshl_b32 s56, s22, 7")
    A("v_add_u32 v1, s56, v1")
    A("v_add_u32 v2, 0x8000, v1")
    A("s_waitcnt lgkmcnt(0)")
    g.stamp(1)
    A("s_mov_b32 s24, s8")
    A("s_and_b32 s25, s9, 0xffff")
    A("s_load_dword s48, s[18:19], s54")
    if o.spf:
        C("warm this XCD's L2 with code / q rows / block table / ctx_lens through the scalar path (speed only)")
        A("s_getpc_b64 s[32:33]")
        lab("L_pc")
        A(f"s_sub_u32 s32, s32, L_pc-{NAME}")
        A("s_subb_u32 s33, s33, 0")
        A("s_lshl_b32 s56, s21, 2"); A("s_add_u32 s56, s56, s22")
        A("s_lshl_b32 s57, s56, 6")
        A("s_load_dword s80, s[32:33], s57")
        A("s_lshr_b32 s58, s56, 4"); A("s_lshl_b32 s58, s58, 13")
        A("s_and_b32 s62, s57, 0x3c0"); A("s_add_u32 s58, s58, s62")
        A("s_lshl_b32 s62, s20, 10"); A("s_add_u32 s58, s58, s62")
        A("s_and_b32 s57, s57, 0xfc0")
        A("s_cmp_lt_u32 s56, 64")
        A("s_cselect_b32 s57, s58, s57")
        A("s_cselect_b64 s[34:35], s[4:5], s[10:11]")
        A("s_load_dword s81, s[34:35], s57")
        A("s_load_dword s82, s[12:13], 0")
    A("s_mov_b32 s28, s18")
    A("s_and_b32 s29, s19, 0xffff")
    for r in range(32): A(f"v_mov_b32 v{AC+r}, 0")
    A(f"v_add_u32 v6, {L_LIST}, v6")
    A("v_lshlrev_b32 v8, 4, v0")
    A("v_lshrrev_b32 v9, 3, v0")
    A("v_lshlrev_b32 v10, 15, v9")
    A("v_lshl_or_b32 v10, v3, 4, v10")
    A("s_lshl_b32 s56, s20, 18"); A("s_lshl_b32 s57, s22, 13"); A("s_add_u32 s56, s56, s57")
    A("s_lshl_b32 s57, s21, 8"); A("s_add_u32 s56, s56, s57"); A(f"s_add_u32 s56, s56, {W_O}")
    A("v_add_u32 v10, s56, v10")
    A("v_lshlrev_b32 v9, 2, v9                 ; q*4")
    A("s_mov_b32 s60, 0x05040100"); A("s_mov_b32 s61, 0x07060302")
    for x in range(4): A(f"s_mov_b32 s{40+x}, 0x0706050{x}")
    A("s_waitcnt lgkmcnt(0)")
    mk_tag()
    A("v_mov_b32 v11, s59")
    A("v_not_b32 v20, v11"); A("v_not_b32 v21, v11"); A("v_not_b32 v22, v11"); A("v_not_b32 v23, v11")
    A(f"v_mov_b32 v15, 0x{NEG_BIG:08x}")
    lab("L_vround")
    A("v_mov_b32 v12, 0")
    if o.bar0: A("s_barrier")
    for k in range(33):
        if k == o.bar1:
            g.stamp(2)
            A("s_barrier")
            g.stamp(3)
        if k == o.bar2:
            A("s_barrier")
            g.stamp(4)
            A(f"ds_read_b32 v13, v9 offset:{L_MROW}")
            A(f"ds_read_b32 v12, v12 offset:{L_STAT}")
            for G_ in range(4): A(f"ds_read_b128 v[{P0+4*G_}:{P0+4*G_+3}], v8 offset:{L_P+1024*G_}")
        if k == o.bar2 + 1:
            A("s_waitcnt lgkmcnt(0)")
            A("v_readfirstlane_b32 s57, v12")
            A("v_cmp_lt_f32 s[46:47], v15, v13")
            if o.prestore:
                A("s_cmp_eq_u32 s57, 4")
                A("s_cselect_b64 exec, s[46:47], 0")
                A(f"buffer_store_dwordx4 v[20:23], v10, s[28:31], 0 offen")
                A(f"buffer_store_dwordx4 v[20:23], v10, s[28:31], 0 offen offset:128")
                A("s_mov_b64 exec, -1")
        if k == o.bara:
            A("s_barrier")
        if k == 32: break
        r = D0 + 4*k
        A(f"buffer_load_dwordx4 v[{r}:{r+3}], {vOff1 if k&1 else vOff0}, s[24:27], s{64+(k>>1)} offen {LDF}")
    g.stamp(5)
    A("s_and_b32 s56, s57, 3")
    A("s_or_b32 s56, s56, s55")
    A("s_cbranch_scc1 L_vspecial")
    lab("L_vpv")
    for G_ in range(4):
        base = D0 + 32*G_
        def perms(n, ms):
            for m in ms:
                a = base + 8*n + m; b = a + 4
                A(f"v_perm_b32 v{B0+4*(2*m)+n}, v{b}, v{a}, s60")
                A(f"v_perm_b32 v{B0+4*(2*m+1)+n}, v{b}, v{a}, s61")
        for n in range(3):
            A(f"s_waitcnt vmcnt({32 - (8*G_ + 2*n + 2)})")
            perms(n, range(4))
        A(f"s_waitcnt vmcnt({32 - (8*G_ + 8)})")
        if G_ == 3: g.stamp(6)
        def mf(j): A(f"v_mfma_f32_16x16x32_bf16 v[{AC+4*j}:{AC+4*j+3}], v[{P0+4*G_}:{P0+4*G_+3}], v[{B0+4*j}:{B0+4*j+3}], v[{AC+4*j}:{AC+4*j+3}]")
        perms(3, [0]); perms(3, [1]); mf(0); mf(1); perms(3, [2]); mf(2); mf(3); perms(3, [3]); mf(4); mf(5); mf(6); mf(7)
    lab("L_vpv_done")
    A("s_and_b32 s56, s57, 2")
    A("s_cbranch_scc1 L_vnext")
    if o.bar3 == "pre": A("s_barrier")
    C("sum the two token halves, tag, publish")
    def red(j):
        a = AC + 4*j
        A(f"v_add_f32_dpp v{O0+j}, v{a+1}, v{a} row_ror:8 row_mask:0xf bank_mask:0x3")
        A(f"v_add_f32_dpp v{O0+j}, v{a+2}, v{a+3} row_ror:8 row_mask:0xf bank_mask:0xc")
    for j in range(4): red(j)
    for j in range(4): A(f"v_perm_b32 v{O0+j}, v{O0+j}, v11, s{40+j}")
    for j in range(4, 8): red(j)
    A("s_mov_b64 exec, s[46:47]")
    if o.xcc:
        A("s_bitcmp1_b32 s57, 2")
        A("s_cbranch_scc0 L_vpub_far")
        A(f"buffer_store_dwordx4 v[{O0}:{O0+3}], v10, s[28:31], 0 offen")
        for j in range(4, 8): A(f"v_perm_b32 v{O0+j}, v{O0+j}, v11, s{40+j-4}")
        A(f"buffer_store_dwordx4 v[{O0+4}:{O0+7}], v10, s[28:31], 0 offen offset:128")
        if o.stamps: A("s_branch L_vfin")
        else: A("s_endpgm")
        lab("L_vpub_far")
    A(f"buffer_store_dwordx4 v[{O0}:{O0+3}], v10, s[28:31], 0 offen {STF}")
    for j in range(4, 8): A(f"v_perm_b32 v{O0+j}, v{O0+j}, v11, s{40+j-4}")
    A(f"buffer_store_dwordx4 v[{O0+4}:{O0+7}], v10, s[28:31], 0 offen offset:128 {STF}")
    lab("L_vfin")
    if o.bar3 == "post": A("s_barrier")
    g.stamp(7)
    g.stamp_out("V")
    A("s_endpgm")

    lab("L_vspecial")
    A("s_and_b32 s56, s57, 1")
    A("s_cbranch_scc1 L_vpv_done")
    C("rescale accumulators by the running-max factor")
    A("v_lshrrev_b32 v14, 4, v0"); A("v_lshlrev_b32 v14, 3, v14")
    A(f"ds_read_b64 v[16:17], v14 offset:{L_FROW}")
    A("s_waitcnt lgkmcnt(0)")
    for j in range(8):
        for r in range(4): A(f"v_mul_f32 v{AC+4*j+r}, v{AC+4*j+r}, v{16+(r>>1)}")
    A("s_branch L_vpv")
    lab("L_vnext")
    A("s_waitcnt vmcnt(0)")
    A("s_lshl_b32 s56, s55, 7")
    A("v_add_u32 v14, s56, v6")
    A("ds_read_b32 v4, v14")
    A("s_add_u32 s55, s55, 1")
    A("s_waitcnt lgkmcnt(0)")
    for i in range(16): A(f"v_readlane_b32 s{64+i}, v4, {i}")
    A("s_nop 7")
    A("s_branch L_vround")

    lab("L_knext")
    A("s_barrier")
    A("s_lshl_b32 s56, s55, 7")
    A("v_add_u32 v152, s56, v6")
    A("v_and_b32 v153, -4, v152")
    A("ds_read_b32 v4, v153")
    A(f"ds_read_u8 {vNv}, v152 offset:4")
    A("s_add_u32 s55, s55, 1")
    A("s_sub_u32 s58, s58, 1")
    A("s_cmp_lg_u32 s58, 0"); A("s_cselect_b32 s57, 2, 0")
    A("s_waitcnt lgkmcnt(0)")
    for i in range(4): A(f"v_readlane_b32 s{64+i}, v4, {16*i}")
    A("s_nop 7")
    A("s_branch L_kround")

    lab("L_slow")
    C("general work list: one item per distinct (position, physical block)")
    TB, PK, NVv = 24, 40, 56
    A("s_load_dwordx4 s[44:47], s[12:13], 0")
    A("v_lshlrev_b32 v60, 2, v0")
    for b in range(4):
        for e in range(4): A(f"global_load_dword v{TB+4*b+e}, v60, s[10:11] offset:{1024*b+256*e}")
    A(f"v_cmp_lt_i32 vcc, 0, {vCtx}")
    A("s_nop 1")
    A(f"v_cndmask_b32 {vScale}, 0, {vScale}, vcc")
    A("s_waitcnt vmcnt(0) lgkmcnt(0)")
    for b in range(4):
        A(f"s_cmp_le_i32 s{44+b}, 0"); A(f"s_cselect_b32 s{44+b}, 4096, s{44+b}"); A(f"s_min_i32 s{44+b}, s{44+b}, 4096")
    for e in range(4):
        A(f"v_lshlrev_b32 v61, 4, v0"); A(f"v_add_u32 v61, {1024*e}, v61")
        for b in range(4):
            t = TB+4*b+e
            A(f"v_cmp_gt_i32 vcc, 0, v{t}"); A(f"v_add_u32 v62, 640, v{t}"); A("s_nop 0"); A(f"v_cndmask_b32 v{t}, v{t}, v62, vcc")
            A(f"v_sub_u32 v{NVv+b}, s{44+b}, v61"); A(f"v_med3_i32 v{NVv+b}, v{NVv+b}, 0, 16")
            A(f"v_cmp_lt_i32 vcc, 0, v{NVv+b}"); A(f"v_lshlrev_b32 v{NVv+b}, {8*b}, v{NVv+b}"); A("s_nop 0")
            A(f"v_cndmask_b32 v{t}, {-1-b}, v{t}, vcc")
        for b in range(4):
            t = TB+4*b+e; p = PK+4*b+e
            A(f"v_mov_b32 v{p}, v{NVv+b}")
            for b2 in range(b+1, 4):
                A(f"v_cmp_eq_u32 vcc, v{t}, v{TB+4*b2+e}"); A("s_nop 1"); A(f"v_cndmask_b32 v62, 0, v{NVv+b2}, vcc"); A(f"v_or_b32 v{p}, v{p}, v62")
            for b2 in range(b):
                A(f"v_cmp_ne_u32 vcc, v{t}, v{TB+4*b2+e}"); A("s_nop 1"); A(f"v_cndmask_b32 v{p}, 0, v{p}, vcc")
    A("s_mov_b32 s56, 0")
    for k in range(16):
        A(f"v_cmp_ne_u32 vcc, 0, v{PK+k}"); A(f"s_mov_b32 s{68+k}, s56"); A("s_bcnt1_i32_b64 s40, vcc"); A("s_add_u32 s56, s56, s40")
    A("s_mul_i32 s40, s21, s56"); A("s_add_u32 s41, s40, s56"); A("s_lshr_b32 s40, s40, 5"); A("s_lshr_b32 s41, s41, 5")
    A("s_sub_u32 s41, s41, s40")
    A("v_and_b32 v61, 31, v0"); A("v_lshlrev_b32 v61, 3, v61"); A("v_bfrev_b32 v62, 1"); A("v_mov_b32 v63, 0")
    A(f"ds_write_b64 v61, v[62:63] offset:{L_LIST}")
    for k in range(16):
        A(f"v_cmp_ne_u32 s[42:43], 0, v{PK+k}")
        A(f"s_sub_u32 s56, s{68+k}, s40")
        A(f"v_lshl_add_u32 v62, v{TB+k}, 16, s53")
        A(f"v_mov_b32 v63, v{PK+k}")
        A("v_mbcnt_lo_u32_b32 v61, s42, 0"); A("v_mbcnt_hi_u32_b32 v61, s43, v61")
        A("v_add_u32 v61, s56, v61")
        A("v_cmp_gt_u32 vcc, s41, v61")
        A("v_lshlrev_b32 v61, 3, v61")
        A("s_and_b64 exec, vcc, s[42:43]")
        A(f"ds_write_b64 v61, v[62:63] offset:{L_LIST}")
        A("s_mov_b64 exec, -1")
    A("s_add_u32 s58, s41, 15"); A("s_lshr_b32 s58, s58, 4")
    A(f"v_mov_b32 {vNv}, 0")
    A("s_cmp_lg_u32 s58, 0"); A("s_cselect_b32 s57, 3, 1")
    A("s_branch L_kverified")
    txt = "\n".join(x for x in g.L if x is not None)
    return txt

KD = f"""
.section .rodata,"a"
.p2align 6
.amdhsa_kernel {NAME}
  .amdhsa_next_free_vgpr 256
  .amdhsa_next_free_sgpr 102
  .amdhsa_accum_offset 256
  .amdhsa_group_segment_fixed_size 0
  .amdhsa_kernarg_size 64
  .amdhsa_user_sgpr_count 2
  .amdhsa_user_sgpr_kernarg_segment_ptr 1
  .amdhsa_system_sgpr_workgroup_id_x 1
.end_amdhsa_kernel
"""
def parser():
    p = argparse.ArgumentParser()
    p.add_argument("--stamps", type=int, default=0)
    p.add_argument("--ldflags", default="nt")
    p.add_argument("--stflags", default="sc1")
    p.add_argument("--plflags", default="sc1")
    p.add_argument("--outflags", default="")
    p.add_argument("--bar0", type=int, default=1)
    p.add_argument("--bar1", type=int, default=14)
    p.add_argument("--bar2", type=int, default=18)
    p.add_argument("--bar3", default="none")
    p.add_argument("--bara", type=int, default=26)
    p.add_argument("--xcc", type=int, default=1)
    p.add_argument("--cpos", type=int, default=2)
    p.add_argument("--prestore", type=int, default=1)
    p.add_argument("--qpos", type=int, default=4)
    p.add_argument("--qflags", default="")
    p.add_argument("--notab", type=int, default=0)
    p.add_argument("--spf", type=int, default=1)
    p.add_argument("--sleep0", type=int, default=0)
    p.add_argument("--sleep1", type=int, default=0)
    p.add_argument("--sleep2", type=int, default=0)
    p.add_argument("--spin", type=lambda x: int(x, 0), default=0x200000)
    p.add_argument("--probe", default="")
    p.add_argument("--probewg", type=int, default=-1)
    p.add_argument("-o", default="out.s")
    return p
if __name__ == "__main__":
    o = parser().parse_args()
    open(o.o, "w").write(HEADER + gen(o) + KD)
```

```python
import sys, os, argparse
NAME = "standalone__paged_block_table_kv_radixattention__decode_kernel"

HEADER = """; Kernarg layout for this problem (64 bytes, ptrs only, base s[0:1]):
; @launch grid=(256,1,1) block=(512,1,1) lds=8192
"""

L_P, L_WMAX, L_WL, L_MROW, L_FROW, L_STAT, L_LIST = 0, 4096, 4224, 4352, 4384, 4416, 4480
W_CEN, W_ML, W_O = 2048, 4096, 524288
KVBYTES = 41943040
NEG_BIG = 0xf149f2ca
NEG_INF = 0xff800000
import struct, math
def f2u(f): return struct.unpack("<I", struct.pack("<f", f))[0]
SCALE = f2u(0.0625 * math.log2(math.e))

class G:
    def __init__(s, opt):
        s.L = []; s.o = opt
    def A(s, x): s.L.append("    " + x)
    def lab(s, x): s.L.append(x + ":")
    def C(s, x): s.L.append("    ; " + x)
    def stamp(s, i):
        if s.o.stamps: s.A(f"s_memrealtime s[{84+2*i}:{85+2*i}]")
    def stamp_out(s, role):
        if not s.o.stamps: return
        A = s.A
        if s.o.probe:
            pr, pi = s.o.probe[0], int(s.o.probe[1:])
            if pr != role: return
            A("s_waitcnt lgkmcnt(0)")
            if s.o.probewg >= 0:
                A(f"s_cmp_lg_u32 s2, {s.o.probewg}"); A(f"s_cbranch_scc1 L_pe{role}")
            A(f"s_sub_u32 s50, s{84+2*pi}, s84")
            A("s_mul_i32 s50, s50, 10")
            A("s_min_u32 s50, s50, 100000")
            A("s_memrealtime s[84:85]")
            A("s_waitcnt lgkmcnt(0)")
            s.lab(f"L_pl{role}")
            A("s_memrealtime s[86:87]")
            A("s_waitcnt lgkmcnt(0)")
            A("s_sub_u32 s51, s86, s84")
            A("s_cmp_lt_u32 s51, s50")
            A(f"s_cbranch_scc1 L_pl{role}")
            s.lab(f"L_pe{role}")
            return
        A("s_waitcnt lgkmcnt(0)")
        A("s_mov_b64 exec, -1")
        A("s_lshl_b32 s50, s2, 3"); A("s_add_u32 s50, s50, s3"); A("s_lshl_b32 s50, s50, 7")
        A("s_add_u32 s50, s50, 0x8000000")
        A("v_mov_b32 v3, s50")
        for i in range(8):
            A(f"v_mov_b32 v4, s{84+2*i}"); A(f"v_mov_b32 v5, s{85+2*i}")
            A(f"buffer_store_dwordx2 v[4:5], v3, s[28:31], 0 offen offset:{8*i}")
            A("s_nop 1")
        A("s_getreg_b32 s50, hwreg(HW_REG_XCC_ID)"); A("s_getreg_b32 s51, hwreg(HW_REG_HW_ID)")
        A("v_mov_b32 v4, s51"); A("v_mov_b32 v5, s50")
        A(f"buffer_store_dwordx2 v[4:5], v3, s[28:31], 0 offen offset:120")

def gen(o):
    g = G(o); A = g.A; lab = g.lab; C = g.C
    LDF = o.ldflags
    STF = o.stflags
    PLF = o.plflags
    vOff0, vOff1, vPhys, vNv = "v1", "v2", "v4", "v5"
    Q0, D0 = 8, 24
    g.L.append('.amdgcn_target "amdgcn-amd-amdhsa--gfx950"\n.text')
    g.L.append(f".globl {NAME}\n.p2align 8\n.type {NAME},@function\n{NAME}:")
    g.stamp(0)
    A("s_load_dwordx16 s[4:19], s[0:1], 0")
    A("s_cmp_ge_u32 s2, 256")
    A("s_cbranch_scc1 L_end")
    A("v_lshrrev_b32 v1, 6, v0")
    A("v_and_b32 v0, 63, v0")
    A("s_and_b32 s20, s2, 7")
    A("v_readfirstlane_b32 s3, v1")
    A("s_lshr_b32 s21, s2, 3")
    C("expected work list (checked against block_table / ctx_lens later; general path otherwise)")
    A("s_mul_i32 s50, s21, 498")
    A("s_add_u32 s51, s50, 498")
    A("s_lshr_b32 s50, s50, 5")
    A("s_lshr_b32 s51, s51, 5")
    A("s_and_b32 s22, s3, 3")
    A("s_lshl_b32 s23, s22, 2")
    A("s_cmp_lt_u32 s3, 4")
    A("s_cselect_b32 s52, 4, 0")
    A("s_cselect_b32 s23, s23, 0")
    A("s_add_u32 s50, s50, s23")
    A("v_bfe_u32 v6, v0, s52, 4")
    A("v_add_u32 v3, s50, v6")
    A("v_lshlrev_b32 v6, 3, v6")
    A("v_cmp_le_u32 vcc, 229, v3")
    A("v_add_u32 v4, 27, v3")
    A("s_lshl_b32 s53, s20, 9                  ; h*512")
    A("v_cndmask_b32 v4, v3, v4, vcc")
    A("v_cmp_le_u32 vcc, 303, v3")
    A("v_add_u32 v5, 54, v4")
    A("s_lshl_b32 s54, s20, 7")
    A("v_cndmask_b32 v4, v4, v5, vcc")
    A("v_cmp_le_u32 vcc, 414, v3")
    A("v_add_u32 v5, 17, v4")
    A("s_mov_b32 s26, %d" % KVBYTES)
    A("v_cndmask_b32 v4, v4, v5, vcc")
    A("v_cmp_le_u32 vcc, s51, v3")
    A("v_lshl_add_u32 v4, v4, 16, s53")
    A("v_bfrev_b32 v5, 1")
    A("v_cndmask_b32 v4, v4, v5, vcc")
    A("s_mov_b32 s27, 0x20000")
    A("s_mov_b32 s30, 0x10000000")
    A("s_mov_b32 s31, 0x20000")
    A("s_mov_b32 s55, 0")
    C("token of this lane: 2*bit3 + 4*bit4 + bit5")
    A("v_bfe_u32 v7, v0, 3, 2")
    A("v_lshrrev_b32 v3, 5, v0")
    A("v_lshl_or_b32 v7, v7, 1, v3")
    A("s_cmp_ge_u32 s3, 4")
    A("s_cbranch_scc1 L_vrole")

    vCtx, vScale, vM, vL, vB128, vTok, vTok8 = "v212", "v213", "v214", "v215", "v216", "v7", "v217"
    vLdsQ, vLdsP, vNinf, vF = "v218", "v219", "v220", "v221"
    NV = 222
    accs = [152, 168]; S0 = 184; T0 = 196
    for i in range(4): A(f"v_readlane_b32 s{64+i}, v4, {16*i}")
    C("K lane offsets: t*4096 + 64*(l>>5) + 16*(l&3)")
    A("v_bfe_u32 v1, v0, 2, 3")
    A("v_lshlrev_b32 v1, 12, v1")
    A("v_lshl_or_b32 v1, v3, 6, v1")
    A("v_and_b32 v3, 3, v0")
    A("v_lshl_or_b32 v1, v3, 4, v1")
    A("v_add_u32 v2, 0x8000, v1")
    C("Q lane offset: (q>>1)*8192 + (q&1)*512 + h*1024 + 16*(l>>3)")
    A("v_bfe_u32 v216, v0, 1, 2")
    A("v_and_b32 v3, 1, v0")
    A("v_lshlrev_b32 v3, 9, v3")
    A("v_lshl_or_b32 v3, v216, 13, v3")
    A("v_lshrrev_b32 v192, 3, v0")
    A("v_lshl_or_b32 v3, v192, 4, v3")
    A("s_lshl_b32 s56, s20, 10")
    A("v_add_u32 v228, s56, v3")
    A("v_lshlrev_b32 v227, 2, v216             ; 4*b")
    A("v_lshlrev_b32 v226, 4, v0")
    A("v_and_b32 v232, 31, v0")
    A("v_lshlrev_b32 v232, 2, v232")
    A("s_waitcnt lgkmcnt(0)")
    g.stamp(1)
    A("s_mov_b32 s24, s6")
    A("s_and_b32 s25, s7, 0xffff")
    A("s_load_dword s48, s[18:19], s54")
    def qloads():
        A(f"global_load_dword {vCtx}, v227, s[12:13] {o.qflags}")
        for i in range(4): A(f"global_load_dwordx4 v[{Q0+4*i}:{Q0+4*i+3}], v228, s[4:5] offset:{128*i} {o.qflags}")
    def mk_tag():
        C("launch tag from the epoch word")
        A("s_add_u32 s49, s48, 1")
        A("s_and_b32 s56, s49, 0xff")
        A("s_mul_i32 s56, s56, 0x01010100")
        A("s_xor_b32 s59, s49, s56")
    A("s_mov_b32 s28, s18")
    A("s_and_b32 s29, s19, 0xffff")
    lab("L_kround")
    for hb in range(9):
        if hb == o.cpos:
            A("s_getreg_b32 s47, hwreg(HW_REG_XCC_ID, 0, 3)")
            A("s_lshl_b32 s47, s47, 29")
            A("s_lshl_b32 s46, s21, 2")
            A("s_add_u32 s46, s46, s54")
            A("v_mov_b32 v231, s46")
            A("s_waitcnt lgkmcnt(0)")
            mk_tag()
            if o.xcc:
                C("census entry: tag + XCD of this workgroup")
                A("s_xor_b32 s47, s47, s59")
                A("v_mov_b32 v230, s47")
                A("s_cmp_eq_u32 s3, 0")
                A("s_cselect_b64 exec, 1, 0")
                A(f"buffer_store_dword v230, v231, s[28:31], 0 offen offset:{W_CEN}")
                A("s_mov_b64 exec, -1")
        if hb == o.tpos:
            if o.touch & 1:
                C("touch the V pages of this wave's items (address translation warm-up)")
                A("s_mov_b32 s32, s8"); A("s_and_b32 s33, s9, 0xffff"); A("s_mov_b32 s34, s26"); A("s_mov_b32 s35, 0x20000")
                A("buffer_load_dword v233, v4, s[32:35], 0 offen nt")
            if o.touch & 2:
                A("global_load_dword v234, v227, s[14:15]")
        if hb == o.qpos: qloads()
        if hb == 8: break
        for i in range(4):
            r = D0 + 16*hb + 4*i
            A(f"buffer_load_dwordx4 v[{r}:{r+3}], {vOff1 if hb&1 else vOff0}, s[24:27], s{64+(hb>>1)} offen offset:{128*i} {LDF}")
    NT = 0 if o.notab else 4
    for b in range(NT): A(f"global_load_dwordx4 v[{T0+4*b}:{T0+4*b+3}], v226, s[10:11] offset:{1024*b} {o.qflags}")
    NTV = NT
    if o.xcc:
        A(f"buffer_load_dword v229, v232, s[28:31], s54 offen offset:{W_CEN} sc1")
        NT += 1
    g.stamp(2)
    if o.bar0: A("s_barrier")
    C("first pass only: constants")
    A("s_cmp_lg_u32 s55, 0")
    A("s_cbranch_scc1 L_kconst_done")
    A(f"v_mov_b32 {vScale}, 0x{SCALE:08x}")
    A(f"v_mov_b32 {vM}, 0x{NEG_BIG:08x}")
    A(f"v_mov_b32 {vL}, 0")
    A(f"v_mov_b32 {vNinf}, 0x{NEG_INF:08x}")
    A(f"v_add_u32 {vTok8}, 8, {vTok}")
    A("v_add_u32 v6, v6, v216")
    A("s_lshl_b32 s56, s22, 5")
    A(f"s_add_u32 s56, s56, {L_LIST}")
    A("v_add_u32 v6, s56, v6")
    A("v_lshlrev_b32 v194, 3, v216             ; 8*b")
    A("s_mov_b32 s56, 0x%08x" % (229 | 202 << 8 | 239 << 16 | 212 << 24))
    A("v_bfe_u32 v194, s56, v194, 8")
    A(f"v_lshlrev_b32 {vB128}, 7, v216")
    A(f"v_add_u32 {vB128}, 128, {vB128}         ; 128*b + 128")
    A("v_and_b32 v3, 7, v0")
    A(f"v_lshlrev_b32 {vLdsQ}, 4, v3            ; q*16")
    A("v_lshlrev_b32 v3, 1, v3")
    A("v_bfe_u32 v192, v0, 3, 1")
    A("v_and_b32 v195, 48, v0")
    A("v_or3_b32 v3, v3, v192, v195")
    A("s_lshl_b32 s56, s22, 10")
    A(f"v_lshl_add_u32 {vLdsP}, v3, 4, s56       ; P address")
    C("valid-token count of (item l>>4, sequence b) under the expected list")
    A("v_lshrrev_b32 v3, 16, v4")
    A(f"v_sub_u32 v192, v3, {vB128}")
    A("v_min_u32 v192, 128, v192")
    A("v_cmp_gt_u32 vcc, 128, v3")
    A("v_add_u32 v192, 128, v192")
    A(f"s_waitcnt vmcnt({4 + 4*(8-o.qpos) + NT})")
    A("v_cndmask_b32 v3, v192, v3, vcc")
    A(f"v_mad_i32_i24 {vNv}, v3, -16, {vCtx}")
    lab("L_kconst_done")
    def qk_mfma(hb):
        acc = accs[hb & 1]
        A(f"s_waitcnt vmcnt({min(4*(8-o.qpos), 28 - 4*hb) + NT})")
        for i in range(4):
            r = D0 + 16*hb + 4*i
            c = "0" if i == 0 else f"v[{acc}:{acc+15}]"
            A(f"v_mfma_f32_32x32x16_bf16 v[{acc}:{acc+15}], v[{r}:{r+3}], v[{Q0+4*i}:{Q0+4*i+3}], {c}")
    def qk_red(hb):
        a = accs[hb & 1]; X = S0 + hb; Y = 192 + (hb & 1)
        T = [(X,0,1,5,3),(X,5,4,5,12),(X,2,3,10,3),(X,7,6,10,12),(Y,8,9,5,3),(Y,13,12,5,12),(Y,10,11,10,3),(Y,15,14,10,12)]
        for (d, own, oth, rm, bm) in T:
            A(f"v_add_f32_dpp v{d}, v{a+oth}, v{a+own} row_ror:8 row_mask:0x{rm:x} bank_mask:0x{bm:x}")
        A("s_nop 1")
        A(f"v_permlane16_swap_b32 v{X}, v{Y}")
        A("s_nop 0")
        A(f"v_add_f32 v{X}, v{X}, v{Y}")
    qk_mfma(0)
    for hb in range(8):
        if hb < 7: qk_mfma(hb+1)
        if hb == 0: A("s_nop 7")
        qk_red(hb)
    for e in range(8): A(f"v_mul_f32 v{S0+e}, v{S0+e}, {vScale}")
    C("verify the expected list (first pass)")
    A("s_cmp_lg_u32 s55, 0")
    A("s_cbranch_scc1 L_kverified")
    A("s_mov_b32 s57, 0                        ; status")
    A("s_mov_b32 s58, 0")
    A("v_lshlrev_b32 v152, 2, v0")
    A("v_add_u32 v153, 1, v152"); A("v_add_u32 v154, 2, v152"); A("v_add_u32 v155, 3, v152")
    A("v_and_b32 v156, 32, v0"); A("v_lshlrev_b32 v156, 2, v156")
    A(f"v_add_u32 v157, 15, {vCtx}"); A("v_lshrrev_b32 v157, 4, v157")
    A("v_xor_b32 v157, v157, v194")
    A("s_waitcnt vmcnt(0)")
    for b in range(NTV):
        for x in range(4): A(f"v_xor_b32 v{T0+4*b+x}, v{T0+4*b+x}, v{152+x}")
        if b < 3:
            for x in range(4): A(f"v_add_u32 v{152+x}, v{152+x}, v156")
        A(f"v_or3_b32 v157, v157, v{T0+4*b}, v{T0+4*b+1}")
        A(f"v_or3_b32 v157, v157, v{T0+4*b+2}, v{T0+4*b+3}")
    A("v_cmp_ne_u32 vcc, 0, v157")
    A("s_cbranch_vccnz L_slow")
    lab("L_kverified")
    if o.xcc:
        A("s_waitcnt vmcnt(0)")
        A("v_cmp_ne_u32 vcc, v229, v230")
        A("s_cmp_eq_u64 vcc, 0")
        A("s_cselect_b32 s44, 4, 0")
        A("s_or_b32 s57, s57, s44")
    C("broadcast nv of the 4 items to every lane")
    A(f"v_mov_b32 v{NV}, {vNv}"); A(f"v_mov_b32 v{NV+2}, {vNv}")
    A("s_nop 1")
    A(f"v_permlane32_swap_b32 v{NV}, v{NV+2}")
    A("s_nop 0")
    A(f"v_mov_b32 v{NV+1}, v{NV}"); A(f"v_mov_b32 v{NV+3}, v{NV+2}")
    A("s_nop 0")
    A(f"v_permlane16_swap_b32 v{NV}, v{NV+1}")
    A(f"v_permlane16_swap_b32 v{NV+2}, v{NV+3}")
    A("s_nop 0")
    for e in range(8): A(f"v_cmp_lt_i32 s[{68+2*e}:{69+2*e}], {vTok8 if e&1 else vTok}, v{NV+(e>>1)}")
    A("s_nop 0")
    for e in range(8): A(f"v_cndmask_b32 v{S0+e}, {vNinf}, v{S0+e}, s[{68+2*e}:{69+2*e}]")
    A(f"v_max3_f32 v152, v{S0}, v{S0+1}, v{S0+2}")
    A(f"v_max3_f32 v153, v{S0+3}, v{S0+4}, v{S0+5}")
    A(f"v_max3_f32 v152, v152, v{S0+6}, v{S0+7}")
    A("v_max_f32 v152, v152, v153")
    def xreduce(op, r, t):
        A("s_nop 1")
        A(f"{op}_dpp {r}, {r}, {r} row_ror:8 row_mask:0xf bank_mask:0xf")
        A(f"v_mov_b32 {t}, {r}")
        A("s_nop 1")
        A(f"v_permlane16_swap_b32 {r}, {t}")
        A("s_nop 0")
        A(f"{op} {r}, {r}, {t}")
        A(f"v_mov_b32 {t}, {r}")
        A("s_nop 1")
        A(f"v_permlane32_swap_b32 {r}, {t}")
        A("s_nop 0")
        A(f"{op} {r}, {r}, {t}")
    xreduce("v_max_f32", "v152", "v153")
    A("s_lshl_b32 s56, s22, 2")
    A(f"v_add_u32 v154, s56, {vLdsQ}")
    A(f"ds_write_b32 v154, v152 offset:{L_WMAX}")
    A("s_waitcnt lgkmcnt(0)")
    g.stamp(3)
    A("s_barrier")
    A(f"ds_read_b128 v[156:159], {vLdsQ} offset:{L_WMAX}")
    A("s_waitcnt lgkmcnt(0)")
    A("v_max3_f32 v152, v156, v157, v158")
    A(f"v_max3_f32 v152, v152, v159, {vM}")
    A(f"v_sub_f32 {vF}, {vM}, v152")
    A(f"v_mov_b32 {vM}, v152")
    for e in range(8): A(f"v_sub_f32 v{S0+e}, v{S0+e}, v152")
    A(f"v_exp_f32 {vF}, {vF}")
    for e in range(8): A(f"v_exp_f32 v{S0+e}, v{S0+e}")
    A(f"v_lshrrev_b32 v153, 2, {vLdsQ}            ; q*4")
    for n in range(4): A(f"v_cvt_pk_bf16_f32 v{156+n}, v{S0+2*n}, v{S0+2*n+1}")
    A(f"ds_write_b128 {vLdsP}, v[156:159] offset:{L_P}")
    A(f"ds_write_b32 v153, {vM} offset:{L_MROW}")
    A(f"ds_write_b32 v153, {vF} offset:{L_FROW}")
    A("v_mov_b32 v160, 0"); A("v_mov_b32 v161, s57")
    A(f"ds_write_b32 v160, v161 offset:{L_STAT}")
    A(f"v_add_f32 v152, v{S0}, v{S0+1}"); A(f"v_add_f32 v153, v{S0+2}, v{S0+3}")
    A(f"v_add_f32 v155, v{S0+4}, v{S0+5}"); A(f"v_add_f32 v162, v{S0+6}, v{S0+7}")
    A("v_add_f32 v152, v152, v153"); A("v_add_f32 v155, v155, v162"); A("v_add_f32 v152, v152, v155")
    xreduce("v_add_f32", "v152", "v153")
    A(f"ds_write_b32 v154, v152 offset:{L_WL}")
    A("s_waitcnt lgkmcnt(0)")
    g.stamp(4)
    A("s_barrier")
    g.stamp(5)
    A(f"ds_read_b128 v[156:159], {vLdsQ} offset:{L_WL}")
    A("s_waitcnt lgkmcnt(0)")
    A("v_add_f32 v156, v156, v157"); A("v_add_f32 v158, v158, v159"); A("v_add_f32 v156, v156, v158")
    A(f"v_fma_f32 {vL}, {vL}, {vF}, v156")
    A("s_cmp_lg_u32 s58, 0")
    A("s_cbranch_scc1 L_knext")
    A("s_lshl_b32 s56, s20, 8"); A("s_add_u32 s56, s56, s21"); A("s_lshl_b32 s56, s56, 7")
    A(f"s_add_u32 s56, s56, {W_ML}")
    A("v_lshrrev_b32 v153, 3, v0")
    A("v_lshl_add_u32 v153, v153, 4, s56")
    A(f"v_lshl_add_u32 v152, {vLdsQ}, 8, v153     ; ML + ((h*8+q)*32+g)*128 + 16*(l>>3)")
    A(f"v_mov_b32 v156, {vM}"); A(f"v_mov_b32 v157, {vL}"); A("v_mov_b32 v158, s59"); A("v_mov_b32 v159, s59")
    A("s_cmp_eq_u32 s3, 0")
    A("s_cselect_b64 s[44:45], -1, 0")
    if o.xcc:
        A("s_bitcmp1_b32 s57, 2")
        A("s_cselect_b64 exec, s[44:45], 0")
        A(f"buffer_store_dwordx4 v[156:159], v152, s[28:31], 0 offen")
        A("s_cselect_b64 exec, 0, s[44:45]")
    else:
        A("s_mov_b64 exec, s[44:45]")
    A(f"buffer_store_dwordx4 v[156:159], v152, s[28:31], 0 offen {STF}")
    A("s_mov_b64 exec, -1")
    C("consumer: row g>>2, slice g&3, 16 columns per wave")
    A("s_lshr_b32 s60, s21, 2                  ; row q")
    A("s_lshl_b32 s56, s20, 3"); A("s_add_u32 s56, s56, s60"); A("s_lshl_b32 s56, s56, 12")
    A(f"s_add_u32 s56, s56, {W_ML}")
    A("v_lshrrev_b32 v24, 2, v0")
    A("v_lshl_add_u32 v25, v24, 7, s56")
    A("s_lshl_b32 s56, s20, 5"); A("s_add_u32 s56, s56, s21"); A("s_lshl_b32 s56, s56, 13")
    A("s_lshl_b32 s61, s22, 6"); A("s_add_u32 s56, s56, s61")
    A(f"s_add_u32 s56, s56, {W_O}")
    A("v_and_b32 v27, 3, v0")
    A("v_lshlrev_b32 v26, 8, v24")
    A("v_lshl_or_b32 v26, v27, 4, v26")
    A("v_add_u32 v26, s56, v26                 ; O address")
    A("s_mov_b32 s61, 4096")
    A("s_mov_b32 s62, 0x0c0c0400")
    A("s_mov_b32 s63, 0x%x" % o.spin)
    C("out address")
    A("s_mov_b32 s36, s14"); A("s_and_b32 s37, s15, 0xffff"); A("s_mov_b32 s38, 32768"); A("s_mov_b32 s39, 0x20000")
    A("s_lshr_b32 s56, s60, 1"); A("s_lshl_b32 s56, s56, 13")
    A("s_and_b32 s40, s60, 1"); A("s_lshl_b32 s40, s40, 9"); A("s_add_u32 s56, s56, s40")
    A("s_lshl_b32 s40, s20, 10"); A("s_add_u32 s56, s56, s40")
    A("s_and_b32 s40, s21, 3"); A("s_lshl_b32 s40, s40, 7"); A("s_add_u32 s56, s56, s40")
    A("s_and_b32 s40, s22, 1"); A("s_lshl_b32 s40, s40, 6"); A("s_add_u32 s56, s56, s40")
    A("s_lshr_b32 s40, s22, 1"); A("s_lshl_b32 s40, s40, 3"); A("s_add_u32 s56, s56, s40")
    A("v_lshrrev_b32 v28, 4, v0")
    A("v_lshlrev_b32 v28, 1, v28")
    A("v_lshl_or_b32 v28, v27, 4, v28")
    A("v_add_u32 v28, s56, v28")
    for r in range(40, 48): A(f"v_mov_b32 v{r}, 0")
    if o.help_n:
        C("helper prefetch list: tail V blocks of neighbouring workgroups (expected list only; speed only)")
        R = o.help_r
        A("v_lshlrev_b32 v60, 2, v0"); A("v_add_u32 v60, s22, v60                 ; job")
        A(f"v_mul_u32_u24 v61, {-(-65536//R)}, v60"); A("v_lshrrev_b32 v61, 16, v61             ; depth")
        A(f"v_mul_u32_u24 v62, {R}, v61"); A("v_sub_u32 v62, v60, v62")
        A(f"v_mul_u32_u24 v62, {o.help_s}, v62")
        A(f"s_add_u32 s56, s21, {o.help_s}")
        A("v_add_u32 v62, s56, v62"); A("v_and_b32 v62, 31, v62"); A("v_add_u32 v62, 1, v62")
        A("v_mul_u32_u24 v62, 498, v62"); A("v_lshrrev_b32 v62, 5, v62")
        A("v_sub_u32 v62, v62, v61"); A("v_subrev_u32 v62, 1, v62                ; item")
        A("v_mov_b32 v63, v62")
        for th, add in ((229, 27), (303, 54), (414, 17)):
            A(f"v_cmp_le_u32 vcc, {th}, v62"); A(f"v_add_u32 v61, {add}, v63"); A("s_nop 0"); A("v_cndmask_b32 v63, v63, v61, vcc")
        A("v_lshl_add_u32 v63, v63, 16, s53")
        A("v_lshrrev_b32 v60, 2, v0"); A("v_lshlrev_b32 v60, 12, v60"); A("v_lshl_or_b32 v60, v27, 7, v60")
        for i in range(o.help_n): A(f"v_readlane_b32 s{64+i}, v63, {i}")
        A("s_mov_b32 s24, s8"); A("s_and_b32 s25, s9, 0xffff")
        A("s_cmp_eq_u32 s55, 0"); A("s_cselect_b32 s26, s26, 0")
    A("s_barrier")
    if o.sleep0: A(f"s_sleep {o.sleep0}")
    if o.help_n:
        A(f"buffer_load_dwordx3 v[32:34], v25, s[28:31], 0 offen {PLF}")
        A(f"buffer_load_dwordx3 v[36:38], v25, s[28:31], 0 offen offset:2048 {PLF}")
        A("s_barrier")
        for i in range(o.help_n): A(f"buffer_load_dword v{64+i}, v60, s[24:27], s{64+i} offen {o.tailflags}")
        A(f"s_waitcnt vmcnt({o.help_n})")
        A("s_branch L_poll1_chk")
    lab("L_poll1")
    A(f"buffer_load_dwordx3 v[32:34], v25, s[28:31], 0 offen {PLF}")
    A(f"buffer_load_dwordx3 v[36:38], v25, s[28:31], 0 offen offset:2048 {PLF}")
    A("s_sub_u32 s63, s63, 1")
    A("s_cbranch_scc1 L_end")
    A("s_waitcnt vmcnt(0)")
    lab("L_poll1_chk")
    A("v_cmp_ne_u32 vcc, s59, v34")
    A("v_cmp_ne_u32 s[40:41], s59, v38")
    A("s_or_b64 vcc, vcc, s[40:41]")
    if o.sleep1:
        A("s_cbranch_scc0 L_poll1_done")
        A(f"s_sleep {o.sleep1}")
        A("s_branch L_poll1")
        lab("L_poll1_done")
    else:
        A("s_cbranch_scc1 L_poll1")
    g.stamp(6)
    C("advance the epoch word once every workgroup of this head has read it")
    A("v_mov_b32 v56, s54"); A("v_mov_b32 v57, s49")
    A("s_or_b32 s56, s21, s3")
    A("s_cselect_b64 exec, 0, 1")
    A(f"buffer_store_dword v57, v56, s[28:31], 0 offen {STF}")
    A("s_mov_b64 exec, -1")
    A("v_max_f32 v29, v32, v36")
    def xred4(op, r, t):
        A("s_nop 1")
        A(f"{op}_dpp {r}, {r}, {r} row_ror:4 row_mask:0xf bank_mask:0xf")
        xreduce(op, r, t)
    xred4("v_max_f32", "v29", "v30")
    A("v_sub_f32 v32, v32, v29"); A("v_sub_f32 v36, v36, v29")
    A("v_exp_f32 v32, v32"); A("v_exp_f32 v36, v36")
    A("v_cmp_lt_f32 s[42:43], 0, v33"); A("v_cmp_lt_f32 s[44:45], 0, v37")
    A("v_mul_f32 v29, v32, v33"); A("v_fmac_f32 v29, v36, v37")
    xred4("v_add_f32", "v29", "v30")
    A("v_rcp_f32 v29, v29")
    A("s_nop 0")
    A("v_mul_f32 v32, v32, v29"); A("v_mul_f32 v36, v36, v29")
    if o.bar3 in ("pre", "post"): A("s_barrier")
    lab("L_poll2")
    A("s_mov_b64 exec, s[42:43]")
    A(f"buffer_load_dwordx4 v[40:43], v26, s[28:31], 0 offen {PLF}")
    A("s_mov_b64 exec, s[44:45]")
    A(f"buffer_load_dwordx4 v[44:47], v26, s[28:31], s61 offen {PLF}")
    A("s_mov_b64 exec, -1")
    A("s_sub_u32 s63, s63, 1")
    A("s_cbranch_scc1 L_end")
    A("s_waitcnt vmcnt(1)")
    A("v_perm_b32 v48, v41, v40, s62"); A("v_perm_b32 v49, v43, v42, s62")
    A("v_lshl_or_b32 v48, v49, 16, v48")
    A("v_cmp_ne_u32 vcc, s59, v48")
    A("s_waitcnt vmcnt(0)")
    A("v_perm_b32 v50, v45, v44, s62"); A("v_perm_b32 v51, v47, v46, s62")
    A("s_and_b64 s[42:43], s[42:43], vcc")
    A("v_lshl_or_b32 v50, v51, 16, v50")
    A("v_cmp_ne_u32 vcc, s59, v50")
    for x in range(4): A(f"v_mul_f32 v{52+x}, v{40+x}, v32")
    A("s_and_b64 s[44:45], s[44:45], vcc")
    A("s_or_b64 s[40:41], s[42:43], s[44:45]")
    if o.sleep2:
        A("s_cbranch_scc0 L_poll2_done")
        A(f"s_sleep {o.sleep2}")
        A("s_branch L_poll2")
        lab("L_poll2_done")
    else:
        A("s_cbranch_scc1 L_poll2")
    for x in range(4): A(f"v_fmac_f32 v{52+x}, v{44+x}, v36")
    A("s_nop 0")
    A("v_permlane32_swap_b32 v52, v54")
    A("v_permlane32_swap_b32 v53, v55")
    A("s_nop 0")
    A("v_add_f32 v52, v52, v54"); A("v_add_f32 v53, v53, v55")
    A("s_nop 1")
    A("v_permlane16_swap_b32 v52, v53")
    A("s_nop 0")
    A("v_add_f32 v52, v52, v53")
    A("s_nop 1")
    A("v_add_f32_dpp v52, v52, v52 row_ror:8 row_mask:0xf bank_mask:0xf")
    A("s_mov_b64 exec, -1")
    A("s_nop 0")
    A("v_add_f32_dpp v52, v52, v52 row_ror:4 row_mask:0xf bank_mask:0xf")
    A("s_mov_b32 exec_lo, 0x000f000f")
    A("s_mov_b32 exec_hi, 0x000f000f")
    A("v_cvt_pk_bf16_f32 v52, v52, v52")
    A(f"buffer_store_short v52, v28, s[36:39], 0 offen {o.outflags}")
    g.stamp(7)
    g.stamp_out("K")
    lab("L_end")
    A("s_endpgm")

    B0, AC, P0, O0 = 152, 184, 216, 232
    lab("L_vrole")
    for i in range(16): A(f"v_readlane_b32 s{64+i}, v4, {i}")
    C("V lane offsets: tok*4096 + slice*128 + 16*(l&7)")
    A("v_and_b32 v3, 7, v0")
    A("v_lshlrev_b32 v1, 12, v7")
    A("v_lshl_or_b32 v1, v3, 4, v1")
    A("s_lshl_b32 s56, s22, 7")
    A("v_add_u32 v1, s56, v1")
    A("v_add_u32 v2, 0x8000, v1")
    A("s_waitcnt lgkmcnt(0)")
    g.stamp(1)
    A("s_mov_b32 s24, s8")
    A("s_and_b32 s25, s9, 0xffff")
    A("s_load_dword s48, s[18:19], s54")
    if o.spf:
        C("warm this XCD's L2 with code / q rows / block table / ctx_lens through the scalar path (speed only)")
        A("s_getpc_b64 s[32:33]")
        lab("L_pc")
        A(f"s_sub_u32 s32, s32, L_pc-{NAME}")
        A("s_subb_u32 s33, s33, 0")
        A("s_lshl_b32 s56, s21, 2"); A("s_add_u32 s56, s56, s22")
        A("s_lshl_b32 s57, s56, 6")
        A("s_load_dword s80, s[32:33], s57")
        A("s_lshr_b32 s58, s56, 4"); A("s_lshl_b32 s58, s58, 13")
        A("s_and_b32 s62, s57, 0x3c0"); A("s_add_u32 s58, s58, s62")
        A("s_lshl_b32 s62, s20, 10"); A("s_add_u32 s58, s58, s62")
        A("s_and_b32 s57, s57, 0xfc0")
        A("s_cmp_lt_u32 s56, 64")
        A("s_cselect_b32 s57, s58, s57")
        A("s_cselect_b64 s[34:35], s[4:5], s[10:11]")
        A("s_load_dword s81, s[34:35], s57")
        A("s_load_dword s82, s[12:13], 0")
    A("s_mov_b32 s28, s18")
    A("s_and_b32 s29, s19, 0xffff")
    for r in range(32): A(f"v_mov_b32 v{AC+r}, 0")
    A(f"v_add_u32 v6, {L_LIST}, v6")
    A("v_lshlrev_b32 v8, 4, v0")
    A("v_lshrrev_b32 v9, 3, v0")
    A("v_lshlrev_b32 v10, 15, v9")
    A("v_lshl_or_b32 v10, v3, 4, v10")
    A("s_lshl_b32 s56, s20, 18"); A("s_lshl_b32 s57, s22, 13"); A("s_add_u32 s56, s56, s57")
    A("s_lshl_b32 s57, s21, 8"); A("s_add_u32 s56, s56, s57"); A(f"s_add_u32 s56, s56, {W_O}")
    A("v_add_u32 v10, s56, v10")
    A("v_lshlrev_b32 v9, 2, v9                 ; q*4")
    A("s_mov_b32 s60, 0x05040100"); A("s_mov_b32 s61, 0x07060302")
    for x in range(4): A(f"s_mov_b32 s{40+x}, 0x0706050{x}")
    A("s_waitcnt lgkmcnt(0)")
    mk_tag()
    A("v_mov_b32 v11, s59")
    A("v_not_b32 v20, v11"); A("v_not_b32 v21, v11"); A("v_not_b32 v22, v11"); A("v_not_b32 v23, v11")
    A(f"v_mov_b32 v15, 0x{NEG_BIG:08x}")
    lab("L_vround")
    A("v_mov_b32 v12, 0")
    if o.bar0: A("s_barrier")
    for k in range(33):
        if k == o.bar1:
            g.stamp(2)
            A("s_barrier")
            g.stamp(3)
        if k == o.bar2:
            A("s_barrier")
            g.stamp(4)
            A(f"ds_read_b32 v13, v9 offset:{L_MROW}")
            A(f"ds_read_b32 v12, v12 offset:{L_STAT}")
            for G_ in range(4): A(f"ds_read_b128 v[{P0+4*G_}:{P0+4*G_+3}], v8 offset:{L_P+1024*G_}")
        if k == o.bar2 + 1:
            A("s_waitcnt lgkmcnt(0)")
            A("v_readfirstlane_b32 s57, v12")
            A("v_cmp_lt_f32 s[46:47], v15, v13")
            if o.prestore:
                A("s_cmp_eq_u32 s57, 4")
                A("s_cselect_b64 exec, s[46:47], 0")
                A(f"buffer_store_dwordx4 v[20:23], v10, s[28:31], 0 offen")
                A(f"buffer_store_dwordx4 v[20:23], v10, s[28:31], 0 offen offset:128")
                A("s_mov_b64 exec, -1")
        if k == o.bara:
            A("s_barrier")
        if o.help_n and k == o.barh:
            A("s_barrier")
        if k == 32: break
        r = D0 + 4*k
        fl = LDF if k < o.tailk else o.tailflags
        A(f"buffer_load_dwordx4 v[{r}:{r+3}], {vOff1 if k&1 else vOff0}, s[24:27], s{64+(k>>1)} offen {fl}")
    g.stamp(5)
    A("s_and_b32 s56, s57, 3")
    A("s_or_b32 s56, s56, s55")
    A("s_cbranch_scc1 L_vspecial")
    lab("L_vpv")
    for G_ in range(4):
        base = D0 + 32*G_
        def perms(n, ms):
            for m in ms:
                a = base + 8*n + m; b = a + 4
                A(f"v_perm_b32 v{B0+4*(2*m)+n}, v{b}, v{a}, s60")
                A(f"v_perm_b32 v{B0+4*(2*m+1)+n}, v{b}, v{a}, s61")
        for n in range(3):
            A(f"s_waitcnt vmcnt({32 - (8*G_ + 2*n + 2)})")
            perms(n, range(4))
        A(f"s_waitcnt vmcnt({32 - (8*G_ + 8)})")
        if G_ == 3: g.stamp(6)
        def mf(j): A(f"v_mfma_f32_16x16x32_bf16 v[{AC+4*j}:{AC+4*j+3}], v[{P0+4*G_}:{P0+4*G_+3}], v[{B0+4*j}:{B0+4*j+3}], v[{AC+4*j}:{AC+4*j+3}]")
        perms(3, [0]); perms(3, [1]); mf(0); mf(1); perms(3, [2]); mf(2); mf(3); perms(3, [3]); mf(4); mf(5); mf(6); mf(7)
    lab("L_vpv_done")
    A("s_and_b32 s56, s57, 2")
    A("s_cbranch_scc1 L_vnext")
    if o.bar3 == "pre": A("s_barrier")
    C("sum the two token halves, tag, publish")
    def red(j):
        a = AC + 4*j
        A(f"v_add_f32_dpp v{O0+j}, v{a+1}, v{a} row_ror:8 row_mask:0xf bank_mask:0x3")
        A(f"v_add_f32_dpp v{O0+j}, v{a+2}, v{a+3} row_ror:8 row_mask:0xf bank_mask:0xc")
    for j in range(4): red(j)
    for j in range(4): A(f"v_perm_b32 v{O0+j}, v{O0+j}, v11, s{40+j}")
    for j in range(4, 8): red(j)
    A("s_mov_b64 exec, s[46:47]")
    if o.xcc:
        A("s_bitcmp1_b32 s57, 2")
        A("s_cbranch_scc0 L_vpub_far")
        A(f"buffer_store_dwordx4 v[{O0}:{O0+3}], v10, s[28:31], 0 offen")
        for j in range(4, 8): A(f"v_perm_b32 v{O0+j}, v{O0+j}, v11, s{40+j-4}")
        A(f"buffer_store_dwordx4 v[{O0+4}:{O0+7}], v10, s[28:31], 0 offen offset:128")
        if o.stamps: A("s_branch L_vfin")
        else: A("s_endpgm")
        lab("L_vpub_far")
    A(f"buffer_store_dwordx4 v[{O0}:{O0+3}], v10, s[28:31], 0 offen {STF}")
    for j in range(4, 8): A(f"v_perm_b32 v{O0+j}, v{O0+j}, v11, s{40+j-4}")
    A(f"buffer_store_dwordx4 v[{O0+4}:{O0+7}], v10, s[28:31], 0 offen offset:128 {STF}")
    lab("L_vfin")
    if o.bar3 == "post": A("s_barrier")
    g.stamp(7)
    g.stamp_out("V")
    A("s_endpgm")

    lab("L_vspecial")
    A("s_and_b32 s56, s57, 1")
    A("s_cbranch_scc1 L_vpv_done")
    C("rescale accumulators by the running-max factor")
    A("v_lshrrev_b32 v14, 4, v0"); A("v_lshlrev_b32 v14, 3, v14")
    A(f"ds_read_b64 v[16:17], v14 offset:{L_FROW}")
    A("s_waitcnt lgkmcnt(0)")
    for j in range(8):
        for r in range(4): A(f"v_mul_f32 v{AC+4*j+r}, v{AC+4*j+r}, v{16+(r>>1)}")
    A("s_branch L_vpv")
    lab("L_vnext")
    A("s_waitcnt vmcnt(0)")
    A("s_lshl_b32 s56, s55, 7")
    A("v_add_u32 v14, s56, v6")
    A("ds_read_b32 v4, v14")
    A("s_add_u32 s55, s55, 1")
    A("s_waitcnt lgkmcnt(0)")
    for i in range(16): A(f"v_readlane_b32 s{64+i}, v4, {i}")
    A("s_nop 7")
    A("s_branch L_vround")

    lab("L_knext")
    A("s_barrier")
    if o.help_n: A("s_barrier")
    A("s_lshl_b32 s56, s55, 7")
    A("v_add_u32 v152, s56, v6")
    A("v_and_b32 v153, -4, v152")
    A("ds_read_b32 v4, v153")
    A(f"ds_read_u8 {vNv}, v152 offset:4")
    A("s_add_u32 s55, s55, 1")
    A("s_sub_u32 s58, s58, 1")
    A("s_cmp_lg_u32 s58, 0"); A("s_cselect_b32 s57, 2, 0")
    A("s_waitcnt lgkmcnt(0)")
    for i in range(4): A(f"v_readlane_b32 s{64+i}, v4, {16*i}")
    A("s_nop 7")
    A("s_branch L_kround")

    lab("L_slow")
    C("general work list: one item per distinct (position, physical block)")
    TB, PK, NVv = 24, 40, 56
    A("s_load_dwordx4 s[44:47], s[12:13], 0")
    A("v_lshlrev_b32 v60, 2, v0")
    for b in range(4):
        for e in range(4): A(f"global_load_dword v{TB+4*b+e}, v60, s[10:11] offset:{1024*b+256*e}")
    A(f"v_cmp_lt_i32 vcc, 0, {vCtx}")
    A("s_nop 1")
    A(f"v_cndmask_b32 {vScale}, 0, {vScale}, vcc")
    A("s_waitcnt vmcnt(0) lgkmcnt(0)")
    for b in range(4):
        A(f"s_cmp_le_i32 s{44+b}, 0"); A(f"s_cselect_b32 s{44+b}, 4096, s{44+b}"); A(f"s_min_i32 s{44+b}, s{44+b}, 4096")
    for e in range(4):
        A(f"v_lshlrev_b32 v61, 4, v0"); A(f"v_add_u32 v61, {1024*e}, v61")
        for b in range(4):
            t = TB+4*b+e
            A(f"v_cmp_gt_i32 vcc, 0, v{t}"); A(f"v_add_u32 v62, 640, v{t}"); A("s_nop 0"); A(f"v_cndmask_b32 v{t}, v{t}, v62, vcc")
            A(f"v_sub_u32 v{NVv+b}, s{44+b}, v61"); A(f"v_med3_i32 v{NVv+b}, v{NVv+b}, 0, 16")
            A(f"v_cmp_lt_i32 vcc, 0, v{NVv+b}"); A(f"v_lshlrev_b32 v{NVv+b}, {8*b}, v{NVv+b}"); A("s_nop 0")
            A(f"v_cndmask_b32 v{t}, {-1-b}, v{t}, vcc")
        for b in range(4):
            t = TB+4*b+e; p = PK+4*b+e
            A(f"v_mov_b32 v{p}, v{NVv+b}")
            for b2 in range(b+1, 4):
                A(f"v_cmp_eq_u32 vcc, v{t}, v{TB+4*b2+e}"); A("s_nop 1"); A(f"v_cndmask_b32 v62, 0, v{NVv+b2}, vcc"); A(f"v_or_b32 v{p}, v{p}, v62")
            for b2 in range(b):
                A(f"v_cmp_ne_u32 vcc, v{t}, v{TB+4*b2+e}"); A("s_nop 1"); A(f"v_cndmask_b32 v{p}, 0, v{p}, vcc")
    A("s_mov_b32 s56, 0")
    for k in range(16):
        A(f"v_cmp_ne_u32 vcc, 0, v{PK+k}"); A(f"s_mov_b32 s{68+k}, s56"); A("s_bcnt1_i32_b64 s40, vcc"); A("s_add_u32 s56, s56, s40")
    A("s_mul_i32 s40, s21, s56"); A("s_add_u32 s41, s40, s56"); A("s_lshr_b32 s40, s40, 5"); A("s_lshr_b32 s41, s41, 5")
    A("s_sub_u32 s41, s41, s40")
    A("v_and_b32 v61, 31, v0"); A("v_lshlrev_b32 v61, 3, v61"); A("v_bfrev_b32 v62, 1"); A("v_mov_b32 v63, 0")
    A(f"ds_write_b64 v61, v[62:63] offset:{L_LIST}")
    for k in range(16):
        A(f"v_cmp_ne_u32 s[42:43], 0, v{PK+k}")
        A(f"s_sub_u32 s56, s{68+k}, s40")
        A(f"v_lshl_add_u32 v62, v{TB+k}, 16, s53")
        A(f"v_mov_b32 v63, v{PK+k}")
        A("v_mbcnt_lo_u32_b32 v61, s42, 0"); A("v_mbcnt_hi_u32_b32 v61, s43, v61")
        A("v_add_u32 v61, s56, v61")
        A("v_cmp_gt_u32 vcc, s41, v61")
        A("v_lshlrev_b32 v61, 3, v61")
        A("s_and_b64 exec, vcc, s[42:43]")
        A(f"ds_write_b64 v61, v[62:63] offset:{L_LIST}")
        A("s_mov_b64 exec, -1")
    A("s_add_u32 s58, s41, 15"); A("s_lshr_b32 s58, s58, 4")
    A(f"v_mov_b32 {vNv}, 0")
    A("s_cmp_lg_u32 s58, 0"); A("s_cselect_b32 s57, 3, 1")
    A("s_branch L_kverified")
    txt = "\n".join(x for x in g.L if x is not None)
    return txt

KD = f"""
.section .rodata,"a"
.p2align 6
.amdhsa_kernel {NAME}
  .amdhsa_next_free_vgpr 256
  .amdhsa_next_free_sgpr 102
  .amdhsa_accum_offset 256
  .amdhsa_group_segment_fixed_size 0
  .amdhsa_kernarg_size 64
  .amdhsa_user_sgpr_count 2
  .amdhsa_user_sgpr_kernarg_segment_ptr 1
  .amdhsa_system_sgpr_workgroup_id_x 1
.end_amdhsa_kernel
"""
def parser():
    p = argparse.ArgumentParser()
    p.add_argument("--stamps", type=int, default=0)
    p.add_argument("--ldflags", default="nt")
    p.add_argument("--stflags", default="sc1")
    p.add_argument("--plflags", default="sc1")
    p.add_argument("--outflags", default="")
    p.add_argument("--bar0", type=int, default=1)
    p.add_argument("--bar1", type=int, default=14)
    p.add_argument("--bar2", type=int, default=18)
    p.add_argument("--bar3", default="none")
    p.add_argument("--bara", type=int, default=26)
    p.add_argument("--help_n", type=int, default=0)
    p.add_argument("--help_r", type=int, default=2)
    p.add_argument("--help_s", type=int, default=1)
    p.add_argument("--barh", type=int, default=32)
    p.add_argument("--tailk", type=int, default=32)
    p.add_argument("--tailflags", default="")
    p.add_argument("--touch", type=int, default=0)
    p.add_argument("--tpos", type=int, default=3)
    p.add_argument("--xcc", type=int, default=1)
    p.add_argument("--cpos", type=int, default=2)
    p.add_argument("--prestore", type=int, default=1)
    p.add_argument("--qpos", type=int, default=4)
    p.add_argument("--qflags", default="")
    p.add_argument("--notab", type=int, default=0)
    p.add_argument("--spf", type=int, default=1)
    p.add_argument("--sleep0", type=int, default=0)
    p.add_argument("--sleep1", type=int, default=0)
    p.add_argument("--sleep2", type=int, default=0)
    p.add_argument("--spin", type=lambda x: int(x, 0), default=0x200000)
    p.add_argument("--probe", default="")
    p.add_argument("--probewg", type=int, default=-1)
    p.add_argument("-o", default="out.s")
    return p
if __name__ == "__main__":
    o = parser().parse_args()
    open(o.o, "w").write(HEADER + gen(o) + KD)
```

```python
import sys, os, argparse
NAME = "standalone__paged_block_table_kv_radixattention__decode_kernel"

HEADER = """; Kernarg layout for this problem (64 bytes, ptrs only, base s[0:1]):
;   offset   0: d_in[0] q  shape=(4, 16, 256) dtype=bfloat16 strides=(8192, 512, 2) contiguous=True
;   offset   8: d_in[1] k_cache  shape=(640, 16, 8, 256) dtype=bfloat16 strides=(65536, 4096, 512, 2) contiguous=True
;   offset  16: d_in[2] v_cache  shape=(640, 16, 8, 256) dtype=bfloat16 strides=(65536, 4096, 512, 2) contiguous=True
;   offset  24: d_in[3] block_table  shape=(4, 256) dtype=int32 strides=(1024, 4) contiguous=True
;   offset  32: d_in[4] ctx_lens  shape=(4,) dtype=int32 strides=(4,) contiguous=True
; @launch grid=(256,1,1) block=(512,1,1) lds=8192
"""

L_P, L_WMAX, L_WL, L_MROW, L_FROW, L_STAT, L_LIST = 0, 4096, 4224, 4352, 4384, 4416, 4480
W_CEN, W_ML, W_O = 2048, 4096, 524288
KVBYTES = 41943040
NEG_BIG = 0xf149f2ca
NEG_INF = 0xff800000
import struct, math
def f2u(f): return struct.unpack("<I", struct.pack("<f", f))[0]
SCALE = f2u(0.0625 * math.log2(math.e))

class G:
    def __init__(s, opt):
        s.L = []; s.o = opt
    def A(s, x): s.L.append("    " + x)
    def lab(s, x): s.L.append(x + ":")
    def C(s, x): s.L.append("    ; " + x)
    def stamp(s, i):
        if s.o.stamps: s.A(f"s_memrealtime s[{84+2*i}:{85+2*i}]")
    def stamp_out(s, role):
        if not s.o.stamps: return
        A = s.A
        if s.o.probe:
            pr, pi = s.o.probe[0], int(s.o.probe[1:])
            if pr != role: return
            A("s_waitcnt lgkmcnt(0)")
            if s.o.probewg >= 0:
                A(f"s_cmp_lg_u32 s2, {s.o.probewg}"); A(f"s_cbranch_scc1 L_pe{role}")
            A(f"s_sub_u32 s50, s{84+2*pi}, s84")
            A("s_mul_i32 s50, s50, 10")
            A("s_min_u32 s50, s50, 100000")
            A("s_memrealtime s[84:85]")
            A("s_waitcnt lgkmcnt(0)")
            s.lab(f"L_pl{role}")
            A("s_memrealtime s[86:87]")
            A("s_waitcnt lgkmcnt(0)")
            A("s_sub_u32 s51, s86, s84")
            A("s_cmp_lt_u32 s51, s50")
            A(f"s_cbranch_scc1 L_pl{role}")
            s.lab(f"L_pe{role}")
            return
        A("s_waitcnt lgkmcnt(0)")
        A("s_mov_b64 exec, -1")
        A("s_lshl_b32 s50, s2, 3"); A("s_add_u32 s50, s50, s3"); A("s_lshl_b32 s50, s50, 7")
        A("s_add_u32 s50, s50, 0x8000000")
        A("v_mov_b32 v3, s50")
        for i in range(8):
            A(f"v_mov_b32 v4, s{84+2*i}"); A(f"v_mov_b32 v5, s{85+2*i}")
            A(f"buffer_store_dwordx2 v[4:5], v3, s[28:31], 0 offen offset:{8*i}")
            A("s_nop 1")
        A("s_getreg_b32 s50, hwreg(HW_REG_XCC_ID)"); A("s_getreg_b32 s51, hwreg(HW_REG_HW_ID)")
        A("v_mov_b32 v4, s51"); A("v_mov_b32 v5, s50")
        A(f"buffer_store_dwordx2 v[4:5], v3, s[28:31], 0 offen offset:120")

def gen(o):
    g = G(o); A = g.A; lab = g.lab; C = g.C
    LDF = o.ldflags
    STF = o.stflags
    PLF = o.plflags
    vOff0, vOff1, vPhys, vNv = "v1", "v2", "v4", "v5"
    Q0, D0 = 8, 24
    g.L.append('.amdgcn_target "amdgcn-amd-amdhsa--gfx950"\n.text')
    g.L.append(f".globl {NAME}\n.p2align 8\n.type {NAME},@function\n{NAME}:")
    g.stamp(0)
    A("s_load_dwordx16 s[4:19], s[0:1], 0")
    A("s_cmp_ge_u32 s2, 256")
    A("s_cbranch_scc1 L_end")
    if o.scramble:
        A("s_lshr_b32 s20, s2, 3"); A("s_and_b32 s20, s20, 7"); A("s_xor_b32 s2, s2, s20")
    A("v_lshrrev_b32 v1, 6, v0")
    A("v_and_b32 v0, 63, v0")
    if o.hperm:
        pk = sum(int(c) << (4*i) for i, c in enumerate(o.hperm))
        A("s_and_b32 s20, s2, 7"); A("s_lshl_b32 s20, s20, 2")
        A(f"s_lshr_b32 s20, 0x{pk:08x}, s20")
        A("s_and_b32 s20, s20, 7")
    elif o.hxor:
        A(f"s_xor_b32 s20, s2, {o.hxor}")
        A("s_and_b32 s20, s20, 7")
    else:
        A("s_and_b32 s20, s2, 7")
    A("v_readfirstlane_b32 s3, v1")
    A("s_lshr_b32 s21, s2, 3")
    C("expected work list (checked against block_table / ctx_lens later; general path otherwise)")
    if o.assign == "cont":
        A("s_mul_i32 s50, s21, 996")
        A("s_add_u32 s51, s50, 996")
        A("s_lshr_b32 s50, s50, 5")
        A("s_lshr_b32 s51, s51, 5")
    else:
        A("s_movk_i32 s51, 996")
    A("s_and_b32 s22, s3, 3")
    if o.kpair:
        C("workgroup slot of this lane: V waves l&31, K wave w 8*(l>>4) + 2w + bit3")
        A("v_lshrrev_b32 v5, 1, v0")
        A("v_bfe_u32 v6, v0, 3, 1")
        A("v_and_or_b32 v5, v5, 24, v6")
        A("v_lshl_add_u32 v5, s22, 1, v5")
        A("v_and_b32 v6, 31, v0")
        A("s_cmp_lt_u32 s3, 4")
        A("s_cselect_b64 vcc, -1, 0")
        A("v_cndmask_b32 v6, v6, v5, vcc")
    else:
        C("workgroup slot of this lane: V waves l&31, K wave w 8w + (l>>3)")
        A("s_lshl_b32 s23, s22, 3")
        A("s_cmp_lt_u32 s3, 4")
        A("s_cselect_b32 s52, 3, 0")
        A("s_cselect_b32 s23, s23, 0")
        A("v_bfe_u32 v6, v0, s52, 5")
        A("v_add_u32 v6, s23, v6")
    if o.assign == "cont":
        A("v_add_u32 v3, s50, v6")
    else:
        A("v_lshl_add_u32 v3, v6, 5, s21")
    A("v_cmp_le_u32 vcc, 458, v3")
    A("v_add_u32 v4, 54, v3")
    A("s_lshl_b32 s53, s20, 9                  ; h*512")
    A("v_cndmask_b32 v4, v3, v4, vcc")
    A("v_cmp_le_u32 vcc, 606, v3")
    A("v_add_u32 v5, 108, v4")
    A("s_lshl_b32 s54, s20, 7")
    A("v_cndmask_b32 v4, v4, v5, vcc")
    A("v_cmp_le_u32 vcc, 828, v3")
    A("v_add_u32 v5, 34, v4")
    A("s_mov_b32 s26, %d" % KVBYTES)
    A("v_cndmask_b32 v4, v4, v5, vcc")
    A("v_cmp_le_u32 vcc, s51, v3")
    A("v_lshl_add_u32 v4, v4, 15, s53")
    A("v_bfrev_b32 v5, 1")
    A("v_cndmask_b32 v4, v4, v5, vcc")
    A("s_mov_b32 s27, 0x20000")
    A("s_mov_b32 s30, 0x10000000")
    A("s_mov_b32 s31, 0x20000")
    A("s_mov_b32 s55, 0")
    C("token of this lane: 2*bit3 + 4*bit4 + bit5")
    A("v_bfe_u32 v7, v0, 3, 2")
    A("v_lshrrev_b32 v3, 5, v0")
    A("v_lshl_or_b32 v7, v7, 1, v3")
    A("s_cmp_ge_u32 s3, 4")
    A("s_cbranch_scc1 L_vrole")

    vCtx, vScale, vM, vL, vB128, vTok, vTok8 = "v212", "v213", "v214", "v215", "v216", "v7", "v217"
    vLdsQ, vLdsP, vNinf, vF = "v218", "v219", "v220", "v221"
    NV = 236
    accs = [152, 168]; S0 = 184; T0 = 196
    for i in range(8): A(f"v_readlane_b32 s{64+i}, v4, {8*i}")
    C("K lane offsets: t*4096 + 64*(l>>5) + 16*(l&3)")
    A("v_bfe_u32 v1, v0, 2, 3")
    A("v_lshlrev_b32 v1, 12, v1")
    A("v_lshl_or_b32 v1, v3, 6, v1")
    A("v_and_b32 v3, 3, v0")
    A("v_lshl_or_b32 v1, v3, 4, v1")
    C("Q lane offset: (q>>1)*8192 + (q&1)*512 + h*1024 + 16*(l>>3)")
    A("v_bfe_u32 v216, v0, 1, 2")
    A("v_and_b32 v3, 1, v0")
    A("v_lshlrev_b32 v3, 9, v3")
    A("v_lshl_or_b32 v3, v216, 13, v3")
    A("v_lshrrev_b32 v192, 3, v0")
    A("v_lshl_or_b32 v3, v192, 4, v3")
    A("s_lshl_b32 s56, s20, 10")
    A("v_add_u32 v228, s56, v3")
    A("v_lshlrev_b32 v227, 2, v216             ; 4*b")
    A("v_lshlrev_b32 v226, 4, v0")
    A("v_and_b32 v232, 31, v0")
    A("v_lshlrev_b32 v232, 2, v232")
    A("s_waitcnt lgkmcnt(0)")
    g.stamp(1)
    A("s_mov_b32 s24, s6")
    A("s_and_b32 s25, s7, 0xffff")
    A("s_load_dword s48, s[18:19], s54")
    def qloads():
        A(f"global_load_dword {vCtx}, v227, s[12:13] {o.qflags}")
        for i in range(4): A(f"global_load_dwordx4 v[{Q0+4*i}:{Q0+4*i+3}], v228, s[4:5] offset:{128*i} {o.qflags}")
    def mk_tag():
        C("launch tag from the epoch word")
        A("s_add_u32 s49, s48, 1")
        A("s_and_b32 s56, s49, 0xff")
        A("s_mul_i32 s56, s56, 0x01010100")
        A("s_xor_b32 s59, s49, s56")
    A("s_mov_b32 s28, s18")
    A("s_and_b32 s29, s19, 0xffff")
    lab("L_kround")
    for hb in range(9):
        if hb == o.cpos:
            A("s_getreg_b32 s47, hwreg(HW_REG_XCC_ID, 0, 3)")
            A("s_lshl_b32 s47, s47, 29")
            A("s_lshl_b32 s46, s21, 2")
            A("s_add_u32 s46, s46, s54")
            A("v_mov_b32 v231, s46")
            A("s_waitcnt lgkmcnt(0)")
            mk_tag()
            if o.xcc:
                C("census entry: tag + XCD of this workgroup")
                A("s_xor_b32 s47, s47, s59")
                A("v_mov_b32 v230, s47")
                A("s_cmp_eq_u32 s3, 0")
                A("s_cselect_b64 exec, 1, 0")
                A(f"buffer_store_dword v230, v231, s[28:31], 0 offen offset:{W_CEN}")
                A("s_mov_b64 exec, -1")
        if hb == o.tpos:
            if o.touch & 1:
                C("touch the V pages of this wave's items (address translation warm-up)")
                A("s_mov_b32 s32, s8"); A("s_and_b32 s33, s9, 0xffff"); A("s_mov_b32 s34, s26"); A("s_mov_b32 s35, 0x20000")
                A("buffer_load_dword v233, v4, s[32:35], 0 offen nt")
            if o.touch & 2:
                A("global_load_dword v234, v227, s[14:15]")
        if hb == o.qpos: qloads()
        if hb == 8: break
        for i in range(4):
            r = D0 + 16*hb + 4*i
            A(f"buffer_load_dwordx4 v[{r}:{r+3}], {vOff0}, s[24:27], s{64+hb} offen offset:{128*i} {LDF}")
    NT = 0 if o.notab else 4
    for b in range(NT): A(f"global_load_dwordx4 v[{T0+4*b}:{T0+4*b+3}], v226, s[10:11] offset:{1024*b} {o.qflags}")
    NTV = NT
    if o.xcc:
        A(f"buffer_load_dword v229, v232, s[28:31], s54 offen offset:{W_CEN} sc1")
        NT += 1
    g.stamp(2)
    if o.bar0: A("s_barrier")
    C("first pass only: constants")
    A("s_cmp_lg_u32 s55, 0")
    A("s_cbranch_scc1 L_kconst_done")
    A(f"v_mov_b32 {vScale}, 0x{SCALE:08x}")
    A(f"v_mov_b32 {vM}, 0x{NEG_BIG:08x}")
    A(f"v_mov_b32 {vL}, 0")
    A(f"v_mov_b32 {vNinf}, 0x{NEG_INF:08x}")
    A("v_lshlrev_b32 v194, 3, v216             ; 8*b")
    A("s_mov_b32 s56, 0x%08x" % (202 | 148 << 8 | 222 << 16 | 168 << 24))
    A("v_bfe_u32 v194, s56, v194, 8")
    A("v_lshlrev_b32 v217, 8, v216")
    A("v_add_u32 v217, 256, v217               ; 256*b + 256")
    A("v_and_b32 v3, 7, v0")
    A(f"v_lshlrev_b32 {vLdsQ}, 4, v3            ; q*16")
    A("v_lshlrev_b32 v3, 1, v3")
    A("v_bfe_u32 v192, v0, 3, 1")
    A("v_and_b32 v195, 48, v0")
    A("v_or3_b32 v3, v3, v192, v195")
    A(f"s_lshl_b32 s56, s22, {2 if o.kpair else 10}")
    A(f"v_lshl_add_u32 {vLdsP}, v3, 4, s56       ; P address")
    C("valid-token count of (slot l>>3, sequence b) under the expected list")
    A("v_lshrrev_b32 v3, 15, v4")
    A("v_sub_u32 v192, v3, v217")
    A("v_min_u32 v192, 256, v192")
    A("v_cmp_gt_u32 vcc, 256, v3")
    A("v_add_u32 v192, 256, v192")
    A(f"s_waitcnt vmcnt({4 + 4*(8-o.qpos) + NT})")
    A("v_cndmask_b32 v3, v192, v3, vcc")
    A(f"v_mad_i32_i24 {vNv}, v3, -8, {vCtx}")
    lab("L_kconst_done")
    def qk_mfma(hb):
        acc = accs[hb & 1]
        A(f"s_waitcnt vmcnt({min(4*(8-o.qpos), 28 - 4*hb) + NT})")
        for i in range(4):
            r = D0 + 16*hb + 4*i
            c = "0" if i == 0 else f"v[{acc}:{acc+15}]"
            A(f"v_mfma_f32_32x32x16_bf16 v[{acc}:{acc+15}], v[{r}:{r+3}], v[{Q0+4*i}:{Q0+4*i+3}], {c}")
    def qk_red(hb):
        a = accs[hb & 1]; X = S0 + hb; Y = 192 + (hb & 1)
        T = [(X,0,1,5,3),(X,5,4,5,12),(X,2,3,10,3),(X,7,6,10,12),(Y,8,9,5,3),(Y,13,12,5,12),(Y,10,11,10,3),(Y,15,14,10,12)]
        for (d, own, oth, rm, bm) in T:
            A(f"v_add_f32_dpp v{d}, v{a+oth}, v{a+own} row_ror:8 row_mask:0x{rm:x} bank_mask:0x{bm:x}")
        A("s_nop 1")
        A(f"v_permlane16_swap_b32 v{X}, v{Y}")
        A("s_nop 0")
        A(f"v_add_f32 v{X}, v{X}, v{Y}")
    qk_mfma(0)
    for hb in range(8):
        if hb < 7: qk_mfma(hb+1)
        if hb == 0: A("s_nop 7")
        qk_red(hb)
    for e in range(8): A(f"v_mul_f32 v{S0+e}, v{S0+e}, {vScale}")
    C("verify the expected list (first pass)")
    A("s_cmp_lg_u32 s55, 0")
    A("s_cbranch_scc1 L_kverified")
    A("s_mov_b32 s57, 0                        ; status")
    A("s_mov_b32 s58, 0")
    A("v_lshlrev_b32 v152, 2, v0")
    A("v_add_u32 v153, 1, v152"); A("v_add_u32 v154, 2, v152"); A("v_add_u32 v155, 3, v152")
    A("v_and_b32 v156, 32, v0"); A("v_lshlrev_b32 v156, 2, v156")
    A(f"v_add_u32 v157, {7-2048}, {vCtx}"); A("v_lshrrev_b32 v157, 3, v157")
    A("v_xor_b32 v157, v157, v194")
    A("s_waitcnt vmcnt(0)")
    for b in range(NTV):
        for x in range(4): A(f"v_xor_b32 v{T0+4*b+x}, v{T0+4*b+x}, v{152+x}")
        if b < 3:
            for x in range(4): A(f"v_add_u32 v{152+x}, v{152+x}, v156")
        A(f"v_or3_b32 v157, v157, v{T0+4*b}, v{T0+4*b+1}")
        A(f"v_or3_b32 v157, v157, v{T0+4*b+2}, v{T0+4*b+3}")
    A("v_cmp_ne_u32 vcc, 0, v157")
    A("s_cbranch_vccnz L_slow")
    lab("L_kverified")
    if o.xcc:
        A("s_waitcnt vmcnt(0)")
        A("v_cmp_ne_u32 vcc, v229, v230")
        A("s_cmp_eq_u64 vcc, 0")
        A("s_cselect_b32 s44, 4, 0")
        A("s_or_b32 s57, s57, s44")
    C("fetch nv of the 8 slots for this lane's row")
    A(f"v_lshrrev_b32 v153, 2, {vLdsQ}            ; q*4")
    for e in range(8): A(f"ds_bpermute_b32 v{NV+e}, v153, {vNv} offset:{32*e}")
    A("s_waitcnt lgkmcnt(0)")
    for e in range(8): A(f"v_cmp_lt_i32 s[{68+2*e}:{69+2*e}], {vTok}, v{NV+e}")
    A("s_nop 0")
    for e in range(8): A(f"v_cndmask_b32 v{S0+e}, {vNinf}, v{S0+e}, s[{68+2*e}:{69+2*e}]")
    A(f"v_max3_f32 v152, v{S0}, v{S0+1}, v{S0+2}")
    A(f"v_max3_f32 v153, v{S0+3}, v{S0+4}, v{S0+5}")
    A(f"v_max3_f32 v152, v152, v{S0+6}, v{S0+7}")
    A("v_max_f32 v152, v152, v153")
    def xreduce(op, r, t):
        A("s_nop 1")
        A(f"{op}_dpp {r}, {r}, {r} row_ror:8 row_mask:0xf bank_mask:0xf")
        A(f"v_mov_b32 {t}, {r}")
        A("s_nop 1")
        A(f"v_permlane16_swap_b32 {r}, {t}")
        A("s_nop 0")
        A(f"{op} {r}, {r}, {t}")
        A(f"v_mov_b32 {t}, {r}")
        A("s_nop 1")
        A(f"v_permlane32_swap_b32 {r}, {t}")
        A("s_nop 0")
        A(f"{op} {r}, {r}, {t}")
    xreduce("v_max_f32", "v152", "v153")
    A("s_lshl_b32 s56, s22, 2")
    A(f"v_add_u32 v154, s56, {vLdsQ}")
    A(f"ds_write_b32 v154, v152 offset:{L_WMAX}")
    A("s_waitcnt lgkmcnt(0)")
    g.stamp(3)
    A("s_barrier")
    A(f"ds_read_b128 v[156:159], {vLdsQ} offset:{L_WMAX}")
    A("s_waitcnt lgkmcnt(0)")
    A("v_max3_f32 v152, v156, v157, v158")
    A(f"v_max3_f32 v152, v152, v159, {vM}")
    A(f"v_sub_f32 {vF}, {vM}, v152")
    A(f"v_mov_b32 {vM}, v152")
    for e in range(8): A(f"v_sub_f32 v{S0+e}, v{S0+e}, v152")
    A(f"v_exp_f32 {vF}, {vF}")
    for e in range(8): A(f"v_exp_f32 v{S0+e}, v{S0+e}")
    A(f"v_lshrrev_b32 v153, 2, {vLdsQ}            ; q*4")
    for n in range(4): A(f"v_cvt_pk_bf16_f32 v{156+n}, v{S0+2*n}, v{S0+2*n+1}")
    if o.kpair:
        A(f"ds_write2st64_b32 {vLdsP}, v156, v157 offset0:0 offset1:4")
        A(f"ds_write2st64_b32 {vLdsP}, v158, v159 offset0:8 offset1:12")
    else:
        A(f"ds_write_b128 {vLdsP}, v[156:159] offset:{L_P}")
    A(f"ds_write_b32 v153, {vM} offset:{L_MROW}")
    A(f"ds_write_b32 v153, {vF} offset:{L_FROW}")
    A("v_mov_b32 v160, 0"); A("v_mov_b32 v161, s57")
    A(f"ds_write_b32 v160, v161 offset:{L_STAT}")
    A(f"v_add_f32 v152, v{S0}, v{S0+1}"); A(f"v_add_f32 v153, v{S0+2}, v{S0+3}")
    A(f"v_add_f32 v155, v{S0+4}, v{S0+5}"); A(f"v_add_f32 v162, v{S0+6}, v{S0+7}")
    A("v_add_f32 v152, v152, v153"); A("v_add_f32 v155, v155, v162"); A("v_add_f32 v152, v152, v155")
    xreduce("v_add_f32", "v152", "v153")
    A(f"ds_write_b32 v154, v152 offset:{L_WL}")
    A("s_waitcnt lgkmcnt(0)")
    g.stamp(4)
    A("s_barrier")
    g.stamp(5)
    A(f"ds_read_b128 v[156:159], {vLdsQ} offset:{L_WL}")
    A("s_waitcnt lgkmcnt(0)")
    A("v_add_f32 v156, v156, v157"); A("v_add_f32 v158, v158, v159"); A("v_add_f32 v156, v156, v158")
    A(f"v_fma_f32 {vL}, {vL}, {vF}, v156")
    A("s_cmp_lg_u32 s58, 0")
    A("s_cbranch_scc1 L_knext")
    if o.abl & 4: A("s_endpgm")
    MLS = o.mls
    A("s_lshl_b32 s56, s20, 8"); A("s_add_u32 s56, s56, s21"); A(f"s_lshl_b32 s56, s56, {MLS}")
    A(f"s_add_u32 s56, s56, {W_ML}")
    A("v_lshrrev_b32 v153, 3, v0")
    A("v_lshl_add_u32 v153, v153, 4, s56")
    A(f"v_lshl_add_u32 v152, {vLdsQ}, {MLS+1}, v153")
    A(f"v_mov_b32 v156, {vM}"); A(f"v_mov_b32 v157, {vL}"); A("v_mov_b32 v158, s59"); A("v_mov_b32 v159, s59")
    A("s_cmp_eq_u32 s3, 0")
    A(f"s_cselect_b64 s[44:45], {[0xff, 0xffff, 0, -1][MLS-4]}, 0")
    if o.xcc:
        A("s_bitcmp1_b32 s57, 2")
        A("s_cselect_b64 exec, s[44:45], 0")
        A(f"buffer_store_dwordx4 v[156:159], v152, s[28:31], 0 offen")
        A("s_cselect_b64 exec, 0, s[44:45]")
    else:
        A("s_mov_b64 exec, s[44:45]")
    A(f"buffer_store_dwordx4 v[156:159], v152, s[28:31], 0 offen {STF}")
    A("s_mov_b64 exec, -1")
    C("consumer: row g>>2, slice g&3, 16 columns per wave")
    A("s_lshr_b32 s60, s21, 2                  ; row q")
    A("s_lshl_b32 s56, s20, 3"); A("s_add_u32 s56, s56, s60"); A(f"s_lshl_b32 s56, s56, {MLS+5}")
    A(f"s_add_u32 s56, s56, {W_ML}")
    A("v_lshrrev_b32 v24, 2, v0")
    A(f"v_lshl_add_u32 v25, v24, {MLS}, s56")
    A("s_lshl_b32 s56, s20, 5"); A("s_add_u32 s56, s56, s21"); A("s_lshl_b32 s56, s56, 13")
    A("s_lshl_b32 s61, s22, 6"); A("s_add_u32 s56, s56, s61")
    A(f"s_add_u32 s56, s56, {W_O}")
    A("v_and_b32 v27, 3, v0")
    A("v_lshlrev_b32 v26, 8, v24")
    A("v_lshl_or_b32 v26, v27, 4, v26")
    A("v_add_u32 v26, s56, v26                 ; O address")
    A("s_mov_b32 s61, 4096")
    A("s_mov_b32 s62, 0x0c0c0400")
    A("s_mov_b32 s63, 0x%x" % o.spin)
    C("out address")
    A("s_mov_b32 s36, s14"); A("s_and_b32 s37, s15, 0xffff"); A("s_mov_b32 s38, 32768"); A("s_mov_b32 s39, 0x20000")
    A("s_lshr_b32 s56, s60, 1"); A("s_lshl_b32 s56, s56, 13")
    A("s_and_b32 s40, s60, 1"); A("s_lshl_b32 s40, s40, 9"); A("s_add_u32 s56, s56, s40")
    A("s_lshl_b32 s40, s20, 10"); A("s_add_u32 s56, s56, s40")
    A("s_and_b32 s40, s21, 3"); A("s_lshl_b32 s40, s40, 7"); A("s_add_u32 s56, s56, s40")
    A("s_and_b32 s40, s22, 1"); A("s_lshl_b32 s40, s40, 6"); A("s_add_u32 s56, s56, s40")
    A("s_lshr_b32 s40, s22, 1"); A("s_lshl_b32 s40, s40, 3"); A("s_add_u32 s56, s56, s40")
    A("v_lshrrev_b32 v28, 4, v0")
    A("v_lshlrev_b32 v28, 1, v28")
    A("v_lshl_or_b32 v28, v27, 4, v28")
    A("v_add_u32 v28, s56, v28")
    for r in range(40, 48): A(f"v_mov_b32 v{r}, 0")
    if o.help_n:
        C("helper prefetch list: tail V blocks of neighbouring workgroups (expected list only; speed only)")
        R = o.help_r
        A("v_lshlrev_b32 v60, 2, v0"); A("v_add_u32 v60, s22, v60                 ; job")
        A(f"v_mul_u32_u24 v61, {-(-65536//R)}, v60"); A("v_lshrrev_b32 v61, 16, v61             ; depth")
        A(f"v_mul_u32_u24 v62, {R}, v61"); A("v_sub_u32 v62, v60, v62")
        A(f"v_mul_u32_u24 v62, {o.help_s}, v62")
        A(f"s_add_u32 s56, s21, {o.help_s}")
        A("v_add_u32 v62, s56, v62"); A("v_and_b32 v62, 31, v62"); A("v_add_u32 v62, 1, v62")
        A("v_mul_u32_u24 v62, 498, v62"); A("v_lshrrev_b32 v62, 5, v62")
        A("v_sub_u32 v62, v62, v61"); A("v_subrev_u32 v62, 1, v62                ; item")
        A("v_mov_b32 v63, v62")
        for th, add in ((229, 27), (303, 54), (414, 17)):
            A(f"v_cmp_le_u32 vcc, {th}, v62"); A(f"v_add_u32 v61, {add}, v63"); A("s_nop 0"); A("v_cndmask_b32 v63, v63, v61, vcc")
        A("v_lshl_add_u32 v63, v63, 16, s53")
        A("v_lshrrev_b32 v60, 2, v0"); A("v_lshlrev_b32 v60, 12, v60"); A("v_lshl_or_b32 v60, v27, 7, v60")
        for i in range(o.help_n): A(f"v_readlane_b32 s{64+i}, v63, {i}")
        A("s_mov_b32 s24, s8"); A("s_and_b32 s25, s9, 0xffff")
        A("s_cmp_eq_u32 s55, 0"); A("s_cselect_b32 s26, s26, 0")
    A("s_barrier")
    if o.sleep0: A(f"s_sleep {o.sleep0}")
    if o.help_n:
        A(f"buffer_load_dwordx3 v[32:34], v25, s[28:31], 0 offen {PLF}")
        A(f"buffer_load_dwordx3 v[36:38], v25, s[28:31], 0 offen offset:{16 << MLS} {PLF}")
        A("s_barrier")
        for i in range(o.help_n): A(f"buffer_load_dword v{64+i}, v60, s[24:27], s{64+i} offen {o.tailflags}")
        A(f"s_waitcnt vmcnt({o.help_n})")
        A("s_branch L_poll1_chk")
    lab("L_poll1")
    A(f"buffer_load_dwordx3 v[32:34], v25, s[28:31], 0 offen {PLF}")
    A(f"buffer_load_dwordx3 v[36:38], v25, s[28:31], 0 offen offset:{16 << MLS} {PLF}")
    A("s_sub_u32 s63, s63, 1")
    A("s_cbranch_scc1 L_end")
    A("s_waitcnt vmcnt(0)")
    lab("L_poll1_chk")
    A("v_cmp_ne_u32 vcc, s59, v34")
    A("v_cmp_ne_u32 s[40:41], s59, v38")
    A("s_or_b64 vcc, vcc, s[40:41]")
    if o.sleep1:
        A("s_cbranch_scc0 L_poll1_done")
        A(f"s_sleep {o.sleep1}")
        A("s_branch L_poll1")
        lab("L_poll1_done")
    else:
        A("s_cbranch_scc1 L_poll1")
    g.stamp(6)
    C("advance the epoch word once every workgroup of this head has read it")
    A("v_mov_b32 v56, s54"); A("v_mov_b32 v57, s49")
    A("s_or_b32 s56, s21, s3")
    A("s_cselect_b64 exec, 0, 1")
    A(f"buffer_store_dword v57, v56, s[28:31], 0 offen {o.eflags}")
    A("s_mov_b64 exec, -1")
    A("v_max_f32 v29, v32, v36")
    def xred4(op, r, t):
        A("s_nop 1")
        A(f"{op}_dpp {r}, {r}, {r} row_ror:4 row_mask:0xf bank_mask:0xf")
        xreduce(op, r, t)
    xred4("v_max_f32", "v29", "v30")
    A("v_sub_f32 v32, v32, v29"); A("v_sub_f32 v36, v36, v29")
    A("v_exp_f32 v32, v32"); A("v_exp_f32 v36, v36")
    A("v_cmp_lt_f32 s[42:43], 0, v33"); A("v_cmp_lt_f32 s[44:45], 0, v37")
    A("v_mul_f32 v29, v32, v33"); A("v_fmac_f32 v29, v36, v37")
    xred4("v_add_f32", "v29", "v30")
    A("v_rcp_f32 v29, v29")
    A("s_nop 0")
    A("v_mul_f32 v32, v32, v29"); A("v_mul_f32 v36, v36, v29")
    if o.abl & 1: A("s_endpgm")
    if o.bar3 in ("pre", "post"): A("s_barrier")
    lab("L_poll2")
    A("s_mov_b64 exec, s[42:43]")
    A(f"buffer_load_dwordx4 v[40:43], v26, s[28:31], 0 offen {PLF}")
    A("s_mov_b64 exec, s[44:45]")
    A(f"buffer_load_dwordx4 v[44:47], v26, s[28:31], s61 offen {PLF}")
    A("s_mov_b64 exec, -1")
    A("s_sub_u32 s63, s63, 1")
    A("s_cbranch_scc1 L_end")
    A(f"s_waitcnt vmcnt({2*o.pdepth+1})")
    A("v_perm_b32 v48, v41, v40, s62"); A("v_perm_b32 v49, v43, v42, s62")
    A("v_lshl_or_b32 v48, v49, 16, v48")
    A("v_cmp_ne_u32 vcc, s59, v48")
    A(f"s_waitcnt vmcnt({2*o.pdepth})")
    A("v_perm_b32 v50, v45, v44, s62"); A("v_perm_b32 v51, v47, v46, s62")
    A("s_and_b64 s[42:43], s[42:43], vcc")
    A("v_lshl_or_b32 v50, v51, 16, v50")
    A("v_cmp_ne_u32 vcc, s59, v50")
    for x in range(4): A(f"v_mul_f32 v{52+x}, v{40+x}, v32")
    A("s_and_b64 s[44:45], s[44:45], vcc")
    A("s_or_b64 s[40:41], s[42:43], s[44:45]")
    if o.sleep2:
        A("s_cbranch_scc0 L_poll2_done")
        A(f"s_sleep {o.sleep2}")
        A("s_branch L_poll2")
        lab("L_poll2_done")
    else:
        A("s_cbranch_scc1 L_poll2")
    for x in range(4): A(f"v_fmac_f32 v{52+x}, v{44+x}, v36")
    A("s_nop 0")
    A("v_permlane32_swap_b32 v52, v54")
    A("v_permlane32_swap_b32 v53, v55")
    A("s_nop 0")
    A("v_add_f32 v52, v52, v54"); A("v_add_f32 v53, v53, v55")
    A("s_nop 1")
    A("v_permlane16_swap_b32 v52, v53")
    A("s_nop 0")
    A("v_add_f32 v52, v52, v53")
    A("s_nop 1")
    A("v_add_f32_dpp v52, v52, v52 row_ror:8 row_mask:0xf bank_mask:0xf")
    A("s_mov_b64 exec, -1")
    A("s_nop 0")
    A("v_add_f32_dpp v52, v52, v52 row_ror:4 row_mask:0xf bank_mask:0xf")
    A("s_mov_b32 exec_lo, 0x000f000f")
    A("s_mov_b32 exec_hi, 0x000f000f")
    A("v_cvt_pk_bf16_f32 v52, v52, v52")
    A(f"buffer_store_short v52, v28, s[36:39], 0 offen {o.outflags}")
    g.stamp(7)
    g.stamp_out("K")
    lab("L_end")
    A("s_endpgm")

    B0, AC, P0, O0 = 152, 184, 216, 232
    lab("L_vrole")
    for i in range(16): A(f"v_readlane_b32 s{64+i}, v4, {i}")
    C("V lane offsets: tok*4096 + slice*128 + 16*(l&7)")
    A("v_and_b32 v3, 7, v0")
    A("v_lshlrev_b32 v1, 12, v7")
    A("v_lshl_or_b32 v1, v3, 4, v1")
    A("s_lshl_b32 s56, s22, 7")
    A("v_add_u32 v1, s56, v1")
    A("s_waitcnt lgkmcnt(0)")
    g.stamp(1)
    A("s_mov_b32 s24, s8")
    A("s_and_b32 s25, s9, 0xffff")
    A("s_load_dword s48, s[18:19], s54")
    if o.spf:
        C("warm this XCD's L2 with code / q rows / block table / ctx_lens through the scalar path (speed only)")
        A("s_getpc_b64 s[32:33]")
        lab("L_pc")
        A(f"s_sub_u32 s32, s32, L_pc-{NAME}")
        A("s_subb_u32 s33, s33, 0")
        A("s_lshl_b32 s56, s21, 2"); A("s_add_u32 s56, s56, s22")
        A("s_lshl_b32 s57, s56, 6")
        A("s_load_dword s80, s[32:33], s57")
        A("s_lshr_b32 s58, s56, 4"); A("s_lshl_b32 s58, s58, 13")
        A("s_and_b32 s62, s57, 0x3c0"); A("s_add_u32 s58, s58, s62")
        A("s_lshl_b32 s62, s20, 10"); A("s_add_u32 s58, s58, s62")
        A("s_and_b32 s57, s57, 0xfc0")
        A("s_cmp_lt_u32 s56, 64")
        A("s_cselect_b32 s57, s58, s57")
        A("s_cselect_b64 s[34:35], s[4:5], s[10:11]")
        A("s_load_dword s81, s[34:35], s57")
        A("s_load_dword s82, s[12:13], 0")
    A("s_mov_b32 s28, s18")
    A("s_and_b32 s29, s19, 0xffff")
    for r in range(32): A(f"v_mov_b32 v{AC+r}, 0")
    A("v_lshlrev_b32 v8, 4, v0")
    A("v_lshrrev_b32 v9, 3, v0")
    A("v_lshlrev_b32 v10, 15, v9")
    A("v_lshl_or_b32 v10, v3, 4, v10")
    A("s_lshl_b32 s56, s20, 18"); A("s_lshl_b32 s57, s22, 13"); A("s_add_u32 s56, s56, s57")
    A("s_lshl_b32 s57, s21, 8"); A("s_add_u32 s56, s56, s57"); A(f"s_add_u32 s56, s56, {W_O}")
    A("v_add_u32 v10, s56, v10")
    A("v_lshlrev_b32 v9, 2, v9                 ; q*4")
    A("s_mov_b32 s60, 0x05040100"); A("s_mov_b32 s61, 0x07060302")
    for x in range(4): A(f"s_mov_b32 s{40+x}, 0x0706050{x}")
    A("s_waitcnt lgkmcnt(0)")
    mk_tag()
    A("v_mov_b32 v11, s59")
    A("v_not_b32 v20, v11"); A("v_not_b32 v21, v11"); A("v_not_b32 v22, v11"); A("v_not_b32 v23, v11")
    A(f"v_mov_b32 v15, 0x{NEG_BIG:08x}")
    lab("L_vround")
    A("v_mov_b32 v12, 0")
    if o.bar0: A("s_barrier")
    for k in range(33):
        if k == o.bar1:
            g.stamp(2)
            A("s_barrier")
            g.stamp(3)
        if k == o.bar2:
            A("s_barrier")
            g.stamp(4)
            A(f"ds_read_b32 v13, v9 offset:{L_MROW}")
            A(f"ds_read_b32 v12, v12 offset:{L_STAT}")
            for G_ in range(4): A(f"ds_read_b128 v[{P0+4*G_}:{P0+4*G_+3}], v8 offset:{L_P+1024*G_}")
        if k == o.bar2 + 1:
            A("s_waitcnt lgkmcnt(0)")
            A("v_readfirstlane_b32 s57, v12")
            A("v_cmp_lt_f32 s[46:47], v15, v13         ; rows this workgroup contributes to")
            if o.prestore:
                A("s_cmp_eq_u32 s57, 4")
                A("s_cselect_b64 exec, s[46:47], 0")
                A(f"buffer_store_dwordx4 v[20:23], v10, s[28:31], 0 offen")
                A(f"buffer_store_dwordx4 v[20:23], v10, s[28:31], 0 offen offset:128")
                A("s_mov_b64 exec, -1")
        if k == o.bara:
            A("s_barrier")
        if o.help_n and k == o.barh:
            A("s_barrier")
        if k == 32: break
        r = D0 + 4*k
        fl = LDF if k < o.tailk else o.tailflags
        A(f"buffer_load_dwordx4 v[{r}:{r+3}], {vOff0}, s[24:27], s{64+(k&15)} offen {fl}")
        if 1 <= k <= 16: A(f"v_readlane_b32 s{64+k-1}, v4, {16+k-1}")
    g.stamp(5)
    A("s_and_b32 s56, s57, 3")
    A("s_or_b32 s56, s56, s55")
    A("s_cbranch_scc1 L_vspecial")
    def red(j):
        a = AC + 4*j
        A(f"v_add_f32_dpp v{O0+j}, v{a+1}, v{a} row_ror:8 row_mask:0xf bank_mask:0x3")
        A(f"v_add_f32_dpp v{O0+j}, v{a+2}, v{a+3} row_ror:8 row_mask:0xf bank_mask:0xc")
    def tag(j): A(f"v_perm_b32 v{O0+j}, v{O0+j}, v11, s{40+(j&3)}")
    lab("L_vpv")
    if o.vprio: A(f"s_setprio {o.vprio}")
    for G_ in range(4):
        base = D0 + 32*G_
        def perms(n, ms):
            for m in ms:
                a = base + 8*n + m; b = a + 4
                A(f"v_perm_b32 v{B0+4*(2*m)+n}, v{b}, v{a}, s60")
                A(f"v_perm_b32 v{B0+4*(2*m+1)+n}, v{b}, v{a}, s61")
        for n in range(3):
            A(f"s_waitcnt vmcnt({32 - (8*G_ + 2*n + 2)})")
            perms(n, range(4))
        A(f"s_waitcnt vmcnt({32 - (8*G_ + 8)})")
        if G_ == 3: g.stamp(6)
        def mf(j): A(f"v_mfma_f32_16x16x32_bf16 v[{AC+4*j}:{AC+4*j+3}], v[{P0+4*G_}:{P0+4*G_+3}], v[{B0+4*j}:{B0+4*j+3}], v[{AC+4*j}:{AC+4*j+3}]")
        if G_ < 3 or not o.vtail:
            perms(3, [0]); perms(3, [1]); mf(0); mf(1); perms(3, [2]); mf(2); mf(3); perms(3, [3]); mf(4); mf(5); mf(6); mf(7)
        else:
            perms(3, [0]); perms(3, [1]); mf(0); perms(3, [2]); mf(1); perms(3, [3]); mf(2); mf(3); mf(4)
            red(0); mf(5); red(1); mf(6); tag(0); tag(1); mf(7)
    if o.vtail:
        A("s_bitcmp1_b32 s57, 1")
        A("s_cbranch_scc1 L_vnext")
        red(2); red(3); tag(2); tag(3)
        A("s_branch L_vpub0") if False else None
    else:
        lab("L_vpv_done")
        A("s_and_b32 s56, s57, 2")
        A("s_cbranch_scc1 L_vnext")
        if o.bar3 == "pre": A("s_barrier")
        C("sum the two token halves, tag, publish")
        for j in range(4): red(j)
        for j in range(4): tag(j)
        for j in range(4, 8): red(j)
    def pub(fl):
        A(f"buffer_store_dwordx4 v[{O0}:{O0+3}], v10, s[28:31], 0 offen {fl}")
        if o.vtail:
            for j in range(4, 8): red(j)
        for j in range(4, 8): tag(j)
        A(f"buffer_store_dwordx4 v[{O0+4}:{O0+7}], v10, s[28:31], 0 offen offset:128 {fl}")
    A("s_mov_b64 exec, s[46:47]")
    if o.abl & 2: A("s_endpgm")
    if o.xcc:
        A("s_bitcmp1_b32 s57, 2")
        A("s_cbranch_scc0 L_vpub_far")
        pub(o.nearflags)
        if o.stamps or o.bar3 == "post": A("s_branch L_vfin") if o.stamps else (A("s_barrier"), A("s_endpgm"))
        else: A("s_endpgm")
        lab("L_vpub_far")
    pub(STF)
    lab("L_vfin")
    if o.bar3 == "post": A("s_barrier")
    g.stamp(7)
    g.stamp_out("V")
    A("s_endpgm")

    lab("L_vspecial")
    A("s_and_b32 s56, s57, 1")
    if o.vtail:
        A("s_cbranch_scc0 L_vresc")
        A("s_bitcmp1_b32 s57, 1")
        A("s_cbranch_scc1 L_vnext")
        A("s_branch L_vfin")
        lab("L_vresc")
    else:
        A("s_cbranch_scc1 L_vpv_done")
    C("rescale accumulators by the running-max factor")
    A("v_lshrrev_b32 v14, 4, v0"); A("v_lshlrev_b32 v14, 3, v14")
    A(f"ds_read_b64 v[16:17], v14 offset:{L_FROW}")
    A("s_waitcnt lgkmcnt(0)")
    for j in range(8):
        for r in range(4): A(f"v_mul_f32 v{AC+4*j+r}, v{AC+4*j+r}, v{16+(r>>1)}")
    A("s_branch L_vpv")
    def list_fetch(t0, t1, kside):
        A("s_lshl_b32 s56, s55, 7")
        A(f"v_lshrrev_b32 {t0}, 1, v6")
        A(f"v_lshl_add_u32 {t0}, {t0}, 3, s56")
        A(f"ds_read_b32 v4, {t0} offset:{L_LIST}")
        if kside:
            A(f"v_add_u32 {t0}, {t0}, v216")
            A(f"ds_read_u8 {vNv}, {t0} offset:{L_LIST+4}")
        A(f"v_and_b32 {t1}, 1, v6")
        A("s_add_u32 s55, s55, 1")
        A("s_waitcnt lgkmcnt(0)")
        A(f"v_lshl_add_u32 v4, {t1}, 15, v4")
        if kside: A(f"v_mad_i32_i24 {vNv}, {t1}, -8, {vNv}")
        A("s_nop 1")
    lab("L_vnext")
    A("s_waitcnt vmcnt(0)")
    list_fetch("v14", "v16", False)
    for i in range(16): A(f"v_readlane_b32 s{64+i}, v4, {i}")
    A("s_nop 7")
    A("s_branch L_vround")

    lab("L_knext")
    A("s_barrier")
    if o.help_n: A("s_barrier")
    list_fetch("v152", "v153", True)
    A("s_sub_u32 s58, s58, 1")
    A("s_cmp_lg_u32 s58, 0"); A("s_cselect_b32 s57, 2, 0")
    for i in range(8): A(f"v_readlane_b32 s{64+i}, v4, {8*i}")
    A("s_nop 7")
    A("s_branch L_kround")

    lab("L_slow")
    C("general work list: one item per distinct (position, physical block)")
    TB, PK, NVv = 24, 40, 56
    A("s_load_dwordx4 s[44:47], s[12:13], 0")
    A("v_lshlrev_b32 v60, 2, v0")
    for b in range(4):
        for e in range(4): A(f"global_load_dword v{TB+4*b+e}, v60, s[10:11] offset:{1024*b+256*e}")
    A(f"v_cmp_lt_i32 vcc, 0, {vCtx}")
    A("s_nop 1")
    A(f"v_cndmask_b32 {vScale}, 0, {vScale}, vcc")
    A("s_waitcnt vmcnt(0) lgkmcnt(0)")
    for b in range(4):
        A(f"s_cmp_le_i32 s{44+b}, 0"); A(f"s_cselect_b32 s{44+b}, 4096, s{44+b}"); A(f"s_min_i32 s{44+b}, s{44+b}, 4096")
    for e in range(4):
        A(f"v_lshlrev_b32 v61, 4, v0"); A(f"v_add_u32 v61, {1024*e}, v61")
        for b in range(4):
            t = TB+4*b+e
            A(f"v_cmp_gt_i32 vcc, 0, v{t}"); A(f"v_add_u32 v62, 640, v{t}"); A("s_nop 0"); A(f"v_cndmask_b32 v{t}, v{t}, v62, vcc")
            A(f"v_sub_u32 v{NVv+b}, s{44+b}, v61"); A(f"v_med3_i32 v{NVv+b}, v{NVv+b}, 0, 16")
            A(f"v_cmp_lt_i32 vcc, 0, v{NVv+b}"); A(f"v_lshlrev_b32 v{NVv+b}, {8*b}, v{NVv+b}"); A("s_nop 0")
            A(f"v_cndmask_b32 v{t}, {-1-b}, v{t}, vcc")
        for b in range(4):
            t = TB+4*b+e; p = PK+4*b+e
            A(f"v_mov_b32 v{p}, v{NVv+b}")
            for b2 in range(b+1, 4):
                A(f"v_cmp_eq_u32 vcc, v{t}, v{TB+4*b2+e}"); A("s_nop 1"); A(f"v_cndmask_b32 v62, 0, v{NVv+b2}, vcc"); A(f"v_or_b32 v{p}, v{p}, v62")
            for b2 in range(b):
                A(f"v_cmp_ne_u32 vcc, v{t}, v{TB+4*b2+e}"); A("s_nop 1"); A(f"v_cndmask_b32 v{p}, 0, v{p}, vcc")
    A("s_mov_b32 s56, 0")
    for k in range(16):
        A(f"v_cmp_ne_u32 vcc, 0, v{PK+k}"); A(f"s_mov_b32 s{68+k}, s56"); A("s_bcnt1_i32_b64 s40, vcc"); A("s_add_u32 s56, s56, s40")
    A("s_mul_i32 s40, s21, s56"); A("s_add_u32 s41, s40, s56"); A("s_lshr_b32 s40, s40, 5"); A("s_lshr_b32 s41, s41, 5")
    A("s_sub_u32 s41, s41, s40")
    A("v_and_b32 v61, 31, v0"); A("v_lshlrev_b32 v61, 3, v61"); A("v_bfrev_b32 v62, 1"); A("v_mov_b32 v63, 0")
    A(f"ds_write_b64 v61, v[62:63] offset:{L_LIST}")
    for k in range(16):
        A(f"v_cmp_ne_u32 s[42:43], 0, v{PK+k}")
        A(f"s_sub_u32 s56, s{68+k}, s40")
        A(f"v_lshl_add_u32 v62, v{TB+k}, 16, s53")
        A(f"v_mov_b32 v63, v{PK+k}")
        A("v_mbcnt_lo_u32_b32 v61, s42, 0"); A("v_mbcnt_hi_u32_b32 v61, s43, v61")
        A("v_add_u32 v61, s56, v61")
        A("v_cmp_gt_u32 vcc, s41, v61")
        A("v_lshlrev_b32 v61, 3, v61")
        A("s_and_b64 exec, vcc, s[42:43]")
        A(f"ds_write_b64 v61, v[62:63] offset:{L_LIST}")
        A("s_mov_b64 exec, -1")
    A("s_add_u32 s58, s41, 15"); A("s_lshr_b32 s58, s58, 4")
    A(f"v_mov_b32 {vNv}, 0")
    A("s_cmp_lg_u32 s58, 0"); A("s_cselect_b32 s57, 3, 1")
    A("s_branch L_kverified")
    txt = "\n".join(x for x in g.L if x is not None)
    return txt

KD = f"""
.section .rodata,"a"
.p2align 6
.amdhsa_kernel {NAME}
  .amdhsa_next_free_vgpr 256
  .amdhsa_next_free_sgpr 102
  .amdhsa_accum_offset 256
  .amdhsa_group_segment_fixed_size 0
  .amdhsa_kernarg_size 64
  .amdhsa_user_sgpr_count 2
  .amdhsa_user_sgpr_kernarg_segment_ptr 1
  .amdhsa_system_sgpr_workgroup_id_x 1
.end_amdhsa_kernel
"""
def parser():
    p = argparse.ArgumentParser()
    p.add_argument("--stamps", type=int, default=0)
    p.add_argument("--ldflags", default="nt")
    p.add_argument("--stflags", default="sc1")
    p.add_argument("--plflags", default="sc1")
    p.add_argument("--outflags", default="")
    p.add_argument("--bar0", type=int, default=1)
    p.add_argument("--bar1", type=int, default=10)
    p.add_argument("--bar2", type=int, default=11)
    p.add_argument("--bar3", default="none")
    p.add_argument("--bara", type=int, default=26)
    p.add_argument("--help_n", type=int, default=0)
    p.add_argument("--help_r", type=int, default=2)
    p.add_argument("--help_s", type=int, default=1)
    p.add_argument("--barh", type=int, default=32)
    p.add_argument("--tailk", type=int, default=32)
    p.add_argument("--tailflags", default="")
    p.add_argument("--touch", type=int, default=0)
    p.add_argument("--tpos", type=int, default=3)
    p.add_argument("--hxor", type=int, default=0)
    p.add_argument("--pdepth", type=int, default=1)
    p.add_argument("--vtail", type=int, default=1)
    p.add_argument("--mls", type=int, default=5)
    p.add_argument("--nearflags", default="")
    p.add_argument("--vprio", type=int, default=0)
    p.add_argument("--hperm", default="67014523")
    p.add_argument("--assign", default="cont")
    p.add_argument("--kpair", type=int, default=0)
    p.add_argument("--abl", type=int, default=0)
    p.add_argument("--eflags", default="sc1")
    p.add_argument("--scramble", type=int, default=0)
    p.add_argument("--xcc", type=int, default=1)
    p.add_argument("--cpos", type=int, default=2)
    p.add_argument("--prestore", type=int, default=0)
    p.add_argument("--qpos", type=int, default=4)
    p.add_argument("--qflags", default="")
    p.add_argument("--notab", type=int, default=0)
    p.add_argument("--spf", type=int, default=1)
    p.add_argument("--sleep0", type=int, default=0)
    p.add_argument("--sleep1", type=int, default=20)
    p.add_argument("--sleep2", type=int, default=0)
    p.add_argument("--spin", type=lambda x: int(x, 0), default=0x200000)
    p.add_argument("--probe", default="")
    p.add_argument("--probewg", type=int, default=-1)
    p.add_argument("-o", default="out.s")
    return p
if __name__ == "__main__":
    o = parser().parse_args()
    open(o.o, "w").write(HEADER + gen(o) + KD)
```

```python
import argparse, struct, math
NAME = "standalone__paged_block_table_kv_radixattention__decode_kernel"

HEADER = """; Kernarg layout for this problem (64 bytes, ptrs only, base s[0:1]):
; @launch grid=(256,1,1) block=(512,1,1) lds=8192
;
"""

L_P, L_WMAX, L_WL, L_MROW, L_FROW, L_STAT, L_LIST = 0, 4096, 4224, 4352, 4384, 4416, 4480
W_CEN, W_ML, W_O = 2048, 4096, 524288
KVBYTES = 41943040
NEG_BIG = 0xf149f2ca
NEG_INF = 0xff800000
def f2u(f): return struct.unpack("<I", struct.pack("<f", f))[0]
SCALE = f2u(0.0625 * math.log2(math.e))

class G:
    def __init__(s, opt): s.L = []; s.o = opt
    def A(s, x, c=None): s.L.append("    " + (x if c is None else f"{x:<44}; {c}"))
    def lab(s, x): s.L.append(x + ":")
    def C(s, x): s.L.append("    ; " + x)
    def stamp(s, i):
        if s.o.stamps: s.A(f"s_memrealtime s[{84+2*i}:{85+2*i}]")
    def stamp_out(s, role):
        if not s.o.stamps: return
        A = s.A
        if s.o.probe:
            pr, pi = s.o.probe[0], int(s.o.probe[1:])
            if pr != role: return
            A("s_waitcnt lgkmcnt(0)")
            if s.o.probewg >= 0:
                A(f"s_cmp_lg_u32 s2, {s.o.probewg}"); A(f"s_cbranch_scc1 L_pe{role}")
            A(f"s_sub_u32 s50, s{84+2*pi}, s84")
            A(f"s_mul_i32 s50, s50, {s.o.probemul}")
            A("s_min_u32 s50, s50, 100000")
            A("s_memrealtime s[84:85]"); A("s_waitcnt lgkmcnt(0)")
            s.lab(f"L_pl{role}")
            A("s_memrealtime s[86:87]"); A("s_waitcnt lgkmcnt(0)")
            A("s_sub_u32 s51, s86, s84"); A("s_cmp_lt_u32 s51, s50"); A(f"s_cbranch_scc1 L_pl{role}")
            s.lab(f"L_pe{role}")
            return
        A("s_waitcnt lgkmcnt(0)")
        A("s_mov_b64 exec, -1")
        A("s_lshl_b32 s50, s2, 3"); A("s_add_u32 s50, s50, s3"); A("s_lshl_b32 s50, s50, 7")
        A("s_add_u32 s50, s50, 0x8000000")
        A("v_mov_b32 v3, s50")
        for i in range(8):
            A(f"v_mov_b32 v4, s{84+2*i}"); A(f"v_mov_b32 v5, s{85+2*i}")
            A(f"buffer_store_dwordx2 v[4:5], v3, s[28:31], 0 offen offset:{8*i}")
            A("s_nop 1")

def gen(o):
    g = G(o); A = g.A; lab = g.lab; C = g.C
    LDF = "nt"
    Q0, D0 = 8, 24
    vNv = "v5"
    g.L.append('.amdgcn_target "amdgcn-amd-amdhsa--gfx950"\n.text')
    g.L.append(".p2align 12")
    g.L.append(f".globl {NAME}\n.p2align 8\n.type {NAME},@function\n{NAME}:")
    g.stamp(0)
    A("s_load_dwordx2 s[24:25], s[0:1], 8", "k_cache -> words 0,1 of the streaming SRD")
    A("s_cmp_ge_u32 s2, 256")
    A("s_cbranch_scc1 L_end", "extra workgroups")
    if o.scramble:
        A("s_lshr_b32 s20, s2, 3"); A("s_and_b32 s20, s20, 7"); A("s_xor_b32 s2, s2, s20")
    A("v_lshrrev_b32 v1, 6, v0")
    A("v_and_b32 v0, 63, v0", "lane")
    pk = sum(int(c) << (4*i) for i, c in enumerate(o.hperm))
    A("s_and_b32 s20, s2, 7")
    A("v_readfirstlane_b32 s3, v1", "wave id")
    A("s_lshl_b32 s20, s20, 2")
    A(f"s_lshr_b32 s20, 0x{pk:08x}, s20")
    A("s_and_b32 s20, s20, 7", "h = kv head")
    A("s_lshr_b32 s21, s2, 3", "g = split index")
    C("expected slot list: 996 half blocks per head, 31 or 32 per workgroup; first its share of")
    C("sequence 3's private blocks (168 slots), then its share of the other 828")
    A("s_mul_i32 s50, s21, 21")
    A("s_add_u32 s51, s50, 21")
    A("s_lshr_b32 s50, s50, 2")
    A("s_lshr_b32 s51, s51, 2")
    A("s_mul_i32 s44, s21, 31")
    A("s_lshr_b32 s45, s21, 3")
    A("s_add_u32 s44, s44, s45")
    A("s_sub_u32 s44, s44, s51", "second part: list index = s44 + slot")
    A("s_sub_u32 s51, s51, s50", "slots in the first part")
    A("s_addk_i32 s50, 1024", "first part: half block = s50 + slot")
    A("s_and_b32 s45, s21, 7")
    A("s_cmp_eq_u32 s45, 7")
    A("s_cselect_b32 s45, 32, 31", "slots of this workgroup")
    A("s_lshl_b32 s53, s20, 9", "h*512")
    A("s_mov_b32 s26, %d" % KVBYTES)
    A("s_mov_b32 s27, 0x20000")
    A("s_mov_b32 s55, 0", "rounds taken from the built list so far")
    A("s_cmp_ge_u32 s3, 4")
    A("s_cbranch_scc1 L_vrole")
    def slot_list(fill):
        A("v_add_u32 v3, s44, v6")
        A("v_cmp_le_u32 vcc, 458, v3")
        A("v_add_u32 v4, 54, v3")
        fill[0]()
        A("v_cndmask_b32 v4, v3, v4, vcc")
        A("v_cmp_le_u32 vcc, 606, v3")
        A("v_add_u32 v5, 108, v4")
        fill[1]()
        A("v_cndmask_b32 v4, v4, v5, vcc")
        A("v_cmp_gt_u32 vcc, s51, v6")
        A("v_add_u32 v5, s50, v6")
        fill[2]()
        A("v_cndmask_b32 v4, v4, v5, vcc")
        A("v_cmp_le_u32 vcc, s45, v6")
        A("v_lshl_add_u32 v4, v4, 15, s53")
        A("v_bfrev_b32 v5, 1")
        A("v_cndmask_b32 v4, v4, v5, vcc", "slot base offset, or out of range (reads 0)")
    def common_consts():
        A("s_and_b32 s22, s3, 3")
        A("s_lshl_b32 s54, s20, 7", "h*128: epoch word / census line")
        A("s_mov_b32 s30, 0x10000000")
        A("s_mov_b32 s31, 0x20000")
    def tok_of_lane(t):
        C("token inside a slot that this lane scores / loads: 2*bit3 + 4*bit4 + bit5")
        A("v_bfe_u32 v7, v0, 3, 2")
        A(f"v_lshrrev_b32 {t}, 5, v0")
        A(f"v_lshl_or_b32 v7, v7, 1, {t}")
    def mk_tag():
        C("launch tag from the epoch word; every byte of the mixed form changes from launch to launch")
        A("s_add_u32 s49, s48, 1")
        A("s_and_b32 s56, s49, 0xff")
        A("s_mul_i32 s56, s56, 0x01010100")
        A("s_xor_b32 s59, s49, s56")

    vCtx, vScale, vM, vL, vTok = "v212", "v213", "v214", "v215", "v7"
    vLdsQ, vLdsP, vNinf, vF = "v218", "v219", "v220", "v221"
    NV = 236
    accs = [152, 168]; S0 = 184; T0 = 196
    C("==== K role.  lane l holds slot 8*(l>>4) + 2*wave + bit3 of the list")
    A("v_lshrrev_b32 v5, 1, v0")
    A("v_bfe_u32 v6, v0, 3, 1")
    A("v_and_or_b32 v5, v5, 24, v6")
    A("v_lshl_add_u32 v6, s3, 1, v5")
    C("K lane offset: ((l>>2)&7)*4096 + (l>>5)*64 + (l&3)*16  (quads read 64 contiguous bytes)")
    slot_list([lambda: A("v_and_b32 v1, 35, v0"), lambda: A("v_mul_u32_u24 v1, 18, v1"), lambda: A("v_lshl_add_u32 v1, v0, 10, v1")])
    A("v_and_b32 v1, 0x7070, v1")
    for i in range(8): A(f"v_readlane_b32 s{64+i}, v4, {8*i}")
    A("s_waitcnt lgkmcnt(0)")
    g.stamp(1)
    lab("L_kround")
    QPOS, CPOS = o.qpos, o.cpos
    for hb in range(8):
        if hb == 1:
            A("s_load_dwordx16 s[4:19], s[0:1], 0", "q k v bt ctx out dbg ws")
            common_consts()
        if hb == 2:
            A("s_waitcnt lgkmcnt(0)")
            A("s_cmp_lg_u32 s55, 0")
            A("s_cbranch_scc1 L_kepoch")
            A("s_load_dword s48, s[18:19], s54", "epoch word left by the previous launch")
            lab("L_kepoch")
            A("s_mov_b32 s28, s18")
            A("s_and_b32 s29, s19, 0xffff")
        if hb == CPOS:
            C("q lane offset: (q>>1)*8192 + (q&1)*512 + h*1024 + 16*(l>>3), q = l&7")
            A("v_bfe_u32 v216, v0, 1, 2", "sequence b of this lane's row")
            A("v_and_b32 v3, 1, v0")
            A("v_lshlrev_b32 v3, 9, v3")
            A("v_lshl_or_b32 v3, v216, 13, v3")
            A("v_lshrrev_b32 v192, 3, v0")
            A("v_lshl_or_b32 v3, v192, 4, v3")
            A("s_lshl_b32 s56, s20, 10")
            A("v_add_u32 v228, s56, v3")
            A("v_lshlrev_b32 v227, 2, v216", "ctx_lens offset")
            A("v_lshlrev_b32 v226, 4, v0", "block_table offset")
            A("v_and_b32 v232, 31, v0")
            A("v_lshlrev_b32 v232, 2, v232", "census offset")
            A("s_getreg_b32 s47, hwreg(HW_REG_XCC_ID, 0, 3)")
            A("s_lshl_b32 s47, s47, 29")
            A("s_lshl_b32 s46, s21, 2")
            A("s_add_u32 s46, s46, s54")
            A("v_mov_b32 v231, s46")
            A("s_waitcnt lgkmcnt(0)")
            mk_tag()
            C("census entry: tag + XCD of this workgroup")
            A("s_xor_b32 s47, s47, s59")
            A("v_mov_b32 v230, s47")
            A("s_cmp_eq_u32 s3, 0")
            A("s_cselect_b64 exec, 1, 0")
            A(f"buffer_store_dword v230, v231, s[28:31], 0 offen offset:{W_CEN}")
            A("s_mov_b64 exec, -1")
        if hb == QPOS:
            A(f"global_load_dword {vCtx}, v227, s[12:13]")
            for i in range(4): A(f"global_load_dwordx4 v[{Q0+4*i}:{Q0+4*i+3}], v228, s[4:5] offset:{128*i}")
        for i in range(4):
            r = D0 + 16*hb + 4*i
            A(f"buffer_load_dwordx4 v[{r}:{r+3}], v1, s[24:27], s{64+hb} offen offset:{128*i} {LDF}")
    for b in range(4): A(f"global_load_dwordx4 v[{T0+4*b}:{T0+4*b+3}], v226, s[10:11] offset:{1024*b}")
    A(f"buffer_load_dword v229, v232, s[28:31], s54 offen offset:{W_CEN} sc1")
    NT = 5
    g.stamp(2)
    A("s_barrier", "#0: K loads issued, V waves take over the load queue")
    A("s_cmp_lg_u32 s55, 0")
    A("s_cbranch_scc1 L_kconst_done")
    C("first pass only: constants")
    tok_of_lane("v3")
    A(f"v_mov_b32 {vScale}, 0x{SCALE:08x}", "log2(e)/16")
    A(f"v_mov_b32 {vM}, 0x{NEG_BIG:08x}", "running max")
    A(f"v_mov_b32 {vL}, 0", "running sum")
    A(f"v_mov_b32 {vNinf}, 0x{NEG_INF:08x}")
    A("v_lshlrev_b32 v194, 3, v216")
    A("s_mov_b32 s56, 0x%08x" % (202 | 148 << 8 | 222 << 16 | 168 << 24))
    A("v_bfe_u32 v194, s56, v194, 8", "expected half-block count of sequence b, minus 256")
    A("v_lshlrev_b32 v217, 8, v216")
    A("v_add_u32 v217, 256, v217")
    A("v_and_b32 v3, 7, v0")
    A(f"v_lshlrev_b32 {vLdsQ}, 4, v3", "q*16")
    A("v_lshlrev_b32 v3, 1, v3")
    A("v_bfe_u32 v192, v0, 3, 1")
    A("v_and_b32 v195, 48, v0")
    A("v_or3_b32 v3, v3, v192, v195")
    A("s_lshl_b32 s56, s22, 2")
    A(f"v_lshl_add_u32 {vLdsP}, v3, 4, s56", "P address: A-operand lane 2q+bit3+(l&48), dword wave")
    C("valid-token count of (slot of this lane, sequence b) under the expected list")
    A("v_lshrrev_b32 v3, 15, v4")
    A("v_sub_u32 v192, v3, v217")
    A("v_min_u32 v192, 256, v192")
    A("v_cmp_gt_u32 vcc, 256, v3")
    A("v_add_u32 v192, 256, v192")
    A(f"s_waitcnt vmcnt({4 + 4*(8-QPOS) + NT})")
    A("v_cndmask_b32 v3, v192, v3, vcc", "logical half block (512 if not in sequence b)")
    A(f"v_mad_i32_i24 {vNv}, v3, -8, {vCtx}")
    lab("L_kconst_done")
    C("S for one slot: rows (token, 16-byte chunk), columns (q, chunk); the matching-chunk entries are summed")
    def qk_mfma(hb):
        acc = accs[hb & 1]
        A(f"s_waitcnt vmcnt({min(4*(8-QPOS), 28 - 4*hb) + NT})")
        for i in range(4):
            r = D0 + 16*hb + 4*i
            c = "0" if i == 0 else f"v[{acc}:{acc+15}]"
            A(f"v_mfma_f32_32x32x16_bf16 v[{acc}:{acc+15}], v[{r}:{r+3}], v[{Q0+4*i}:{Q0+4*i+3}], {c}")
    def qk_red(hb):
        a = accs[hb & 1]; X = S0 + hb; Y = 192 + (hb & 1)
        T = [(X,0,1,5,3),(X,5,4,5,12),(X,2,3,10,3),(X,7,6,10,12),(Y,8,9,5,3),(Y,13,12,5,12),(Y,10,11,10,3),(Y,15,14,10,12)]
        for (d, own, oth, rm, bm) in T:
            A(f"v_add_f32_dpp v{d}, v{a+oth}, v{a+own} row_ror:8 row_mask:0x{rm:x} bank_mask:0x{bm:x}")
        A("s_nop 1")
        A(f"v_permlane16_swap_b32 v{X}, v{Y}")
        A("s_nop 0")
        A(f"v_add_f32 v{X}, v{X}, v{Y}")
    qk_mfma(0)
    for hb in range(8):
        if hb < 7: qk_mfma(hb+1)
        if hb == 0: A("s_nop 7")
        qk_red(hb)
    for e in range(8): A(f"v_mul_f32 v{S0+e}, v{S0+e}, {vScale}")
    A("s_cmp_lg_u32 s55, 0")
    A("s_cbranch_scc1 L_kverified")
    C("first pass: compare block_table and ceil(ctx_lens/8) with what the expected list assumes")
    A("s_mov_b32 s57, 0", "status: 1 discard pass, 2 more rounds, 4 plain stores ok")
    A("s_mov_b32 s58, 0", "rounds left")
    A("v_lshlrev_b32 v152, 2, v0")
    A("v_add_u32 v153, 1, v152"); A("v_add_u32 v154, 2, v152"); A("v_add_u32 v155, 3, v152")
    A("v_and_b32 v156, 32, v0"); A("v_lshlrev_b32 v156, 2, v156")
    A(f"v_add_u32 v157, {7-2048}, {vCtx}"); A("v_lshrrev_b32 v157, 3, v157")
    A("v_xor_b32 v157, v157, v194")
    A("s_waitcnt vmcnt(0)")
    for b in range(4):
        for x in range(4): A(f"v_xor_b32 v{T0+4*b+x}, v{T0+4*b+x}, v{152+x}")
        if b < 3:
            for x in range(4): A(f"v_add_u32 v{152+x}, v{152+x}, v156")
        A(f"v_or3_b32 v157, v157, v{T0+4*b}, v{T0+4*b+1}")
        A(f"v_or3_b32 v157, v157, v{T0+4*b+2}, v{T0+4*b+3}")
    A("v_cmp_ne_u32 vcc, 0, v157")
    A("s_cmp_lg_u64 vcc, 0")
    A("s_cbranch_scc1 L_slow")
    lab("L_kverified")
    A("s_waitcnt vmcnt(0)")
    A("v_cmp_ne_u32 vcc, v229, v230")
    A("s_cmp_eq_u64 vcc, 0")
    A("s_cselect_b32 s44, 4, 0")
    A("s_or_b32 s57, s57, s44", "whole head on this XCD: plain stores reach every reader")
    C("mask: token < valid count of (slot, sequence)")
    A(f"v_lshrrev_b32 v153, 2, {vLdsQ}")
    for e in range(8): A(f"ds_bpermute_b32 v{NV+e}, v153, {vNv} offset:{32*e}")
    A("s_waitcnt lgkmcnt(0)")
    for e in range(8): A(f"v_cmp_lt_i32 s[{68+2*e}:{69+2*e}], {vTok}, v{NV+e}")
    A("s_nop 0")
    for e in range(8): A(f"v_cndmask_b32 v{S0+e}, {vNinf}, v{S0+e}, s[{68+2*e}:{69+2*e}]")
    C("row max over this wave's 64 tokens, then over the four waves")
    A(f"v_max3_f32 v152, v{S0}, v{S0+1}, v{S0+2}")
    A(f"v_max3_f32 v153, v{S0+3}, v{S0+4}, v{S0+5}")
    A(f"v_max3_f32 v152, v152, v{S0+6}, v{S0+7}")
    A("v_max_f32 v152, v152, v153")
    def xreduce(op, r, t):
        A("s_nop 1")
        A(f"{op}_dpp {r}, {r}, {r} row_ror:8 row_mask:0xf bank_mask:0xf")
        A(f"v_mov_b32 {t}, {r}")
        A("s_nop 1")
        A(f"v_permlane16_swap_b32 {r}, {t}")
        A("s_nop 0")
        A(f"{op} {r}, {r}, {t}")
        A(f"v_mov_b32 {t}, {r}")
        A("s_nop 1")
        A(f"v_permlane32_swap_b32 {r}, {t}")
        A("s_nop 0")
        A(f"{op} {r}, {r}, {t}")
    xreduce("v_max_f32", "v152", "v153")
    A("s_lshl_b32 s56, s22, 2")
    A(f"v_add_u32 v154, s56, {vLdsQ}")
    A(f"ds_write_b32 v154, v152 offset:{L_WMAX}")
    A("s_waitcnt lgkmcnt(0)")
    g.stamp(3)
    A("s_barrier", "#1: wave maxima")
    A(f"ds_read_b128 v[156:159], {vLdsQ} offset:{L_WMAX}")
    A("s_waitcnt lgkmcnt(0)")
    A("v_max3_f32 v152, v156, v157, v158")
    A(f"v_max3_f32 v152, v152, v159, {vM}")
    A(f"v_sub_f32 {vF}, {vM}, v152")
    A(f"v_mov_b32 {vM}, v152")
    for e in range(8): A(f"v_sub_f32 v{S0+e}, v{S0+e}, v152")
    A(f"v_exp_f32 {vF}, {vF}", "rescale factor for earlier rounds")
    for e in range(8): A(f"v_exp_f32 v{S0+e}, v{S0+e}")
    A(f"v_lshrrev_b32 v153, 2, {vLdsQ}")
    for n in range(4): A(f"v_cvt_pk_bf16_f32 v{156+n}, v{S0+2*n}, v{S0+2*n+1}")
    A(f"ds_write2st64_b32 {vLdsP}, v156, v157 offset0:0 offset1:4")
    A(f"ds_write2st64_b32 {vLdsP}, v158, v159 offset0:8 offset1:12")
    A(f"ds_write_b32 v153, {vM} offset:{L_MROW}")
    A(f"ds_write_b32 v153, {vF} offset:{L_FROW}")
    A("v_mov_b32 v160, 0"); A("v_mov_b32 v161, s57")
    A(f"ds_write_b32 v160, v161 offset:{L_STAT}")
    A(f"v_add_f32 v152, v{S0}, v{S0+1}"); A(f"v_add_f32 v163, v{S0+2}, v{S0+3}")
    A(f"v_add_f32 v155, v{S0+4}, v{S0+5}"); A(f"v_add_f32 v162, v{S0+6}, v{S0+7}")
    A("v_add_f32 v152, v152, v163"); A("v_add_f32 v155, v155, v162"); A("v_add_f32 v152, v152, v155")
    xreduce("v_add_f32", "v152", "v163")
    A(f"ds_write_b32 v154, v152 offset:{L_WL}")
    A("s_waitcnt lgkmcnt(0)")
    g.stamp(4)
    A("s_barrier", "#2: P, m, status, wave sums")
    g.stamp(5)
    A(f"ds_read_b128 v[156:159], {vLdsQ} offset:{L_WL}")
    A("s_waitcnt lgkmcnt(0)")
    A("v_add_f32 v156, v156, v157"); A("v_add_f32 v158, v158, v159"); A("v_add_f32 v156, v156, v158")
    A(f"v_fma_f32 {vL}, {vL}, {vF}, v156")
    A("s_cmp_lg_u32 s58, 0")
    A("s_cbranch_scc1 L_knext")
    C("publish {m, l, tag^m^l} of the 8 rows: ML + ((h*8+q)*32+g)*16")
    A("s_lshl_b32 s56, s20, 8"); A("s_add_u32 s56, s56, s21"); A("s_lshl_b32 s56, s56, 4")
    A(f"s_add_u32 s56, s56, {W_ML}")
    A(f"v_lshl_add_u32 v152, {vLdsQ}, 5, s56")
    A(f"v_mov_b32 v156, {vM}"); A(f"v_mov_b32 v157, {vL}")
    A(f"v_xor_b32 v158, {vM}, {vL}"); A("v_xor_b32 v158, s59, v158"); A("v_mov_b32 v159, v158")
    A("s_cmp_eq_u32 s3, 0")
    A("s_cselect_b64 s[44:45], 0xff, 0")
    A("s_bitcmp1_b32 s57, 2")
    A("s_cselect_b64 exec, s[44:45], 0")
    A("buffer_store_dwordx4 v[156:159], v152, s[28:31], 0 offen")
    A("s_cselect_b64 exec, 0, s[44:45]")
    A("buffer_store_dwordx4 v[156:159], v152, s[28:31], 0 offen sc1")
    A("s_mov_b64 exec, -1")
    C("==== combine: row g>>2, column slice g&3; lane = (producer l>>2 and +16, granule 4*wave + (l&3))")
    A("s_lshr_b32 s60, s21, 2", "row q")
    A("s_lshl_b32 s56, s20, 3"); A("s_add_u32 s56, s56, s60"); A("s_lshl_b32 s56, s56, 9")
    A(f"s_add_u32 s56, s56, {W_ML}")
    A("v_lshrrev_b32 v24, 2, v0")
    A("v_lshl_add_u32 v25, v24, 4, s56", "(m,l) address")
    A("s_lshl_b32 s56, s20, 5"); A("s_add_u32 s56, s56, s21"); A("s_lshl_b32 s56, s56, 13")
    A("s_lshl_b32 s61, s22, 6"); A("s_add_u32 s56, s56, s61")
    A(f"s_add_u32 s56, s56, {W_O}")
    A("v_and_b32 v27, 3, v0")
    A("v_lshlrev_b32 v26, 8, v24")
    A("v_lshl_or_b32 v26, v27, 4, v26")
    A("v_add_u32 v26, s56, v26", "O address")
    A("s_mov_b32 s61, 4096")
    A("s_mov_b32 s62, 0x0c0c0400")
    A("s_mov_b32 s63, 0x%x" % o.spin, "bound on the polling passes")
    A("s_mov_b32 s36, s14"); A("s_and_b32 s37, s15, 0xffff"); A("s_mov_b32 s38, 32768"); A("s_mov_b32 s39, 0x20000")
    A("s_lshr_b32 s56, s60, 1"); A("s_lshl_b32 s56, s56, 13")
    A("s_and_b32 s40, s60, 1"); A("s_lshl_b32 s40, s40, 9"); A("s_add_u32 s56, s56, s40")
    A("s_lshl_b32 s40, s20, 10"); A("s_add_u32 s56, s56, s40")
    A("s_and_b32 s40, s21, 3"); A("s_lshl_b32 s40, s40, 7"); A("s_add_u32 s56, s56, s40")
    A("s_and_b32 s40, s22, 1"); A("s_lshl_b32 s40, s40, 6"); A("s_add_u32 s56, s56, s40")
    A("s_lshr_b32 s40, s22, 1"); A("s_lshl_b32 s40, s40, 3"); A("s_add_u32 s56, s56, s40")
    A("v_lshrrev_b32 v28, 4, v0")
    A("v_lshlrev_b32 v28, 1, v28")
    A("v_lshl_or_b32 v28, v27, 4, v28")
    A("v_add_u32 v28, s56, v28", "out address")
    A("s_andn2_b32 s40, 0xff, s59", "finite filler whose tag byte never matches")
    for r in range(40, 48): A(f"v_mov_b32 v{r}, {'s40' if r in (40, 44) else 0}")
    A("s_barrier", "#3: most V loads issued; (m,l) of the other splits are out by now")
    lab("L_poll1")
    A("buffer_load_dwordx3 v[32:34], v25, s[28:31], 0 offen sc1")
    A("buffer_load_dwordx3 v[36:38], v25, s[28:31], 0 offen offset:256 sc1")
    A("s_sub_u32 s63, s63, 1")
    A("s_cbranch_scc1 L_end")
    A("s_waitcnt vmcnt(0)")
    A("v_xor_b32 v29, v32, v33"); A("v_xor_b32 v30, v36, v37")
    A("v_xor_b32 v29, v29, v34"); A("v_xor_b32 v30, v30, v38")
    A("v_cmp_ne_u32 vcc, s59, v29")
    A("v_cmp_ne_u32 s[40:41], s59, v30")
    A("s_or_b64 vcc, vcc, s[40:41]")
    A("s_cbranch_scc1 L_poll1")
    g.stamp(6)
    C("every workgroup of this head has read the epoch word: advance it for the next launch")
    A("v_mov_b32 v56, s54"); A("v_mov_b32 v57, s49")
    A("s_or_b32 s56, s21, s3")
    A("s_cselect_b64 exec, 0, 1")
    A("buffer_store_dword v57, v56, s[28:31], 0 offen")
    A("s_mov_b64 exec, -1")
    C("weights exp2(m_g - M) / sum_g exp2(m_g - M) l_g")
    A("v_max_f32 v29, v32, v36")
    def xred4(op, r, t):
        A("s_nop 1")
        A(f"{op}_dpp {r}, {r}, {r} row_ror:4 row_mask:0xf bank_mask:0xf")
        xreduce(op, r, t)
    xred4("v_max_f32", "v29", "v30")
    A("v_sub_f32 v32, v32, v29"); A("v_sub_f32 v36, v36, v29")
    A("v_exp_f32 v32, v32"); A("v_exp_f32 v36, v36")
    A("v_cmp_lt_f32 s[42:43], 0, v33", "splits that publish this row")
    A("v_cmp_lt_f32 s[44:45], 0, v37")
    A("v_mul_f32 v29, v32, v33"); A("v_fmac_f32 v29, v36, v37")
    xred4("v_add_f32", "v29", "v30")
    A("v_rcp_f32 v29, v29")
    A("s_nop 0")
    A("v_mul_f32 v32, v32, v29"); A("v_mul_f32 v36, v36, v29")
    C("poll the granules still missing; a granule that carries the tag never changes again, so one")
    C("younger pass may stay in flight over the same registers")
    lab("L_poll2")
    A("s_mov_b64 exec, s[42:43]")
    A("buffer_load_dwordx4 v[40:43], v26, s[28:31], 0 offen sc1")
    A("s_mov_b64 exec, s[44:45]")
    A("buffer_load_dwordx4 v[44:47], v26, s[28:31], s61 offen sc1")
    A("s_mov_b64 exec, -1")
    A("s_sub_u32 s63, s63, 1")
    A("s_cbranch_scc1 L_end")
    A(f"s_waitcnt vmcnt({2*o.pdepth+1})")
    A("v_perm_b32 v48, v41, v40, s62"); A("v_perm_b32 v49, v43, v42, s62")
    A("v_lshl_or_b32 v48, v49, 16, v48")
    A("v_cmp_ne_u32 vcc, s59, v48")
    A(f"s_waitcnt vmcnt({2*o.pdepth})")
    A("v_perm_b32 v50, v45, v44, s62"); A("v_perm_b32 v51, v47, v46, s62")
    A("s_and_b64 s[42:43], s[42:43], vcc")
    A("v_lshl_or_b32 v50, v51, 16, v50")
    A("v_cmp_ne_u32 vcc, s59, v50")
    for x in range(4): A(f"v_mul_f32 v{52+x}, v{40+x}, v32")
    A("s_and_b64 s[44:45], s[44:45], vcc")
    A("s_or_b64 s[40:41], s[42:43], s[44:45]")
    A("s_cbranch_scc1 L_poll2")
    for x in (0, 2, 1, 3): A(f"v_fmac_f32 v{52+x}, v{44+x}, v36")
    A("v_permlane32_swap_b32 v52, v54")
    A("s_nop 0")
    A("v_permlane32_swap_b32 v53, v55")
    A("v_add_f32 v52, v52, v54"); A("v_add_f32 v53, v53, v55")
    A("s_mov_b32 s40, 0x000f000f"); A("s_mov_b32 s41, 0x000f000f")
    A("v_permlane16_swap_b32 v52, v53")
    A("v_add_f32 v52, v52, v53")
    A("s_nop 1")
    A("v_add_f32_dpp v52, v52, v52 row_ror:8 row_mask:0xf bank_mask:0xf")
    A("s_nop 1")
    A("v_add_f32_dpp v52, v52, v52 row_ror:4 row_mask:0xf bank_mask:0xf")
    A("s_mov_b64 exec, s[40:41]")
    A("v_cvt_pk_bf16_f32 v52, v52, v52")
    A("buffer_store_short v52, v28, s[36:39], 0 offen")
    g.stamp(7)
    g.stamp_out("K")
    lab("L_end")
    A("s_endpgm")

    B0, AC, P0, O0 = 152, 184, 216, 232
    lab("L_vrole")
    C("==== V role.  lane l holds slot l&31 of the list")
    A("s_load_dwordx16 s[4:19], s[0:1], 0")
    common_consts()
    A("v_and_b32 v6, 31, v0")
    slot_list([lambda: A("s_nop 0")]*3)
    tok_of_lane("v3")
    for i in range(16): A(f"v_readlane_b32 s{64+i}, v4, {i}")
    C("V lane offset: token*4096 + slice*128 + 16*(l&7)")
    A("v_and_b32 v3, 7, v0")
    A("v_lshlrev_b32 v1, 12, v7")
    A("v_lshl_or_b32 v1, v3, 4, v1")
    A("s_lshl_b32 s56, s22, 7")
    A("v_add_u32 v1, s56, v1")
    A("s_waitcnt lgkmcnt(0)")
    g.stamp(1)
    A("s_mov_b32 s24, s8")
    A("s_and_b32 s25, s9, 0xffff")
    A("s_load_dword s48, s[18:19], s54")
    A("s_mov_b32 s28, s18")
    A("s_and_b32 s29, s19, 0xffff")
    for r in range(32): A(f"v_mov_b32 v{AC+r}, 0")
    A("v_lshlrev_b32 v8, 4, v0", "P read address")
    A("v_lshrrev_b32 v9, 3, v0", "row q this lane publishes")
    A("v_lshlrev_b32 v10, 15, v9")
    A("v_lshl_or_b32 v10, v3, 4, v10")
    A("s_lshl_b32 s56, s20, 18"); A("s_lshl_b32 s57, s22, 13"); A("s_add_u32 s56, s56, s57")
    A("s_lshl_b32 s57, s21, 8"); A("s_add_u32 s56, s56, s57"); A(f"s_add_u32 s56, s56, {W_O}")
    A("v_add_u32 v10, s56, v10", "O + (((h*8+q)*4+slice)*32+g)*256 + 16*(l&7)")
    A("v_lshlrev_b32 v9, 2, v9")
    A("s_mov_b32 s60, 0x05040100"); A("s_mov_b32 s61, 0x07060302")
    for x in range(4): A(f"s_mov_b32 s{40+x}, 0x0706050{x}")
    A(f"v_mov_b32 v15, 0x{NEG_BIG:08x}")
    A("s_waitcnt lgkmcnt(0)")
    mk_tag()
    A("v_mov_b32 v11, s59")
    lab("L_vround")
    A("v_mov_b32 v12, 0")
    A("s_barrier", "#0")
    for k in range(32):
        if k == o.bar1:
            g.stamp(2); A("s_barrier", "#1"); g.stamp(3)
        if k == o.bar2:
            A("s_barrier", "#2"); g.stamp(4)
            A(f"ds_read_b32 v13, v9 offset:{L_MROW}")
            A(f"ds_read_b32 v12, v12 offset:{L_STAT}")
            for G_ in range(4): A(f"ds_read_b128 v[{P0+4*G_}:{P0+4*G_+3}], v8 offset:{L_P+1024*G_}")
        if k == o.bar2 + 1:
            A("s_waitcnt lgkmcnt(0)")
            A("v_readfirstlane_b32 s57, v12")
            A("v_cmp_lt_f32 s[46:47], v15, v13", "rows this workgroup contributes to")
        if k == o.bar3: A("s_barrier", "#3")
        r = D0 + 4*k
        A(f"buffer_load_dwordx4 v[{r}:{r+3}], v1, s[24:27], s{64+(k&15)} offen {LDF}")
        if 1 <= k <= 16: A(f"v_readlane_b32 s{64+k-1}, v4, {16+k-1}")
    g.stamp(5)
    A("s_and_b32 s56, s57, 3")
    A("s_or_b32 s56, s56, s55")
    A("s_cbranch_scc1 L_vspecial")
    def red(j):
        a = AC + 4*j
        A(f"v_add_f32_dpp v{O0+j}, v{a+1}, v{a} row_ror:8 row_mask:0xf bank_mask:0x3")
        A(f"v_add_f32_dpp v{O0+j}, v{a+2}, v{a+3} row_ror:8 row_mask:0xf bank_mask:0xc")
    def tag(j): A(f"v_perm_b32 v{O0+j}, v{O0+j}, v11, s{40+(j&3)}")
    lab("L_vpv")
    C("8 slots per step: transpose 8x8 bf16 inside the lane, then one MFMA per column j of the 16-byte chunk;")
    C("rows (q, token half), columns (chunk, token half); matching halves are summed at the end")
    for G_ in range(4):
        base = D0 + 32*G_
        def perms(n, ms):
            for m in ms:
                a = base + 8*n + m; b = a + 4
                A(f"v_perm_b32 v{B0+4*(2*m)+n}, v{b}, v{a}, s60")
                A(f"v_perm_b32 v{B0+4*(2*m+1)+n}, v{b}, v{a}, s61")
        for n in range(3):
            A(f"s_waitcnt vmcnt({31 - (8*G_ + 2*n + 1)})")
            perms(n, range(4))
        A(f"s_waitcnt vmcnt({31 - (8*G_ + 7)})")
        if G_ == 3: g.stamp(6)
        def mf(j): A(f"v_mfma_f32_16x16x32_bf16 v[{AC+4*j}:{AC+4*j+3}], v[{P0+4*G_}:{P0+4*G_+3}], v[{B0+4*j}:{B0+4*j+3}], v[{AC+4*j}:{AC+4*j+3}]")
        if G_ < 3:
            perms(3, [0]); perms(3, [1]); mf(0); mf(1); perms(3, [2]); mf(2); mf(3); perms(3, [3]); mf(4); mf(5); mf(6); mf(7)
        else:
            perms(3, [0]); perms(3, [1]); mf(0); perms(3, [2]); mf(1); perms(3, [3]); mf(2); mf(3); mf(4)
            red(0); mf(5); red(1); mf(6); tag(0); tag(1); mf(7)
    A("s_bitcmp1_b32 s57, 1")
    A("s_cbranch_scc1 L_vnext")
    C("publish: low byte of every dword carries one byte of the tag")
    red(2); red(3); tag(2); tag(3)
    def pub(fl):
        A(f"buffer_store_dwordx4 v[{O0}:{O0+3}], v10, s[28:31], 0 offen{fl}")
        for j in range(4, 8): red(j)
        for j in range(4, 8): tag(j)
        A(f"buffer_store_dwordx4 v[{O0+4}:{O0+7}], v10, s[28:31], 0 offen offset:128{fl}")
    A("s_mov_b64 exec, s[46:47]")
    A("s_bitcmp1_b32 s57, 2")
    A("s_cbranch_scc0 L_vpub_far")
    pub("")
    A("s_branch L_vfin" if o.stamps else "s_endpgm")
    lab("L_vpub_far")
    pub(" sc1")
    lab("L_vfin")
    g.stamp(7)
    g.stamp_out("V")
    A("s_endpgm")

    lab("L_vspecial")
    A("s_and_b32 s56, s57, 1")
    A("s_cbranch_scc0 L_vresc")
    A("s_bitcmp1_b32 s57, 1")
    A("s_cbranch_scc1 L_vnext")
    A("s_branch L_vfin", "no slots at all: nothing to publish")
    lab("L_vresc")
    C("rescale the accumulators to the new running max")
    A("v_lshrrev_b32 v14, 4, v0"); A("v_lshlrev_b32 v14, 3, v14")
    A(f"ds_read_b64 v[16:17], v14 offset:{L_FROW}")
    A("s_waitcnt lgkmcnt(0)")
    for j in range(8):
        for r in range(4): A(f"v_mul_f32 v{AC+4*j+r}, v{AC+4*j+r}, v{16+(r>>1)}")
    A("s_branch L_vpv")
    def list_fetch(t0, t1, kside):
        C("next round: list item = round*16 + slot/2, half = slot&1")
        A("s_lshl_b32 s56, s55, 7")
        A(f"v_lshrrev_b32 {t0}, 1, v6")
        A(f"v_lshl_add_u32 {t0}, {t0}, 3, s56")
        A(f"ds_read_b32 v4, {t0} offset:{L_LIST}")
        if kside:
            A(f"v_add_u32 v164, {t0}, v216")
            A(f"ds_read_u8 {vNv}, v164 offset:{L_LIST+4}")
        A(f"v_and_b32 {t1}, 1, v6")
        A("s_add_u32 s55, s55, 1")
        A("s_waitcnt lgkmcnt(0)")
        A(f"v_lshl_add_u32 v4, {t1}, 15, v4")
        if kside: A(f"v_mad_i32_i24 {vNv}, {t1}, -8, {vNv}")
        A("s_nop 1")
    lab("L_vnext")
    A("s_waitcnt vmcnt(0)")
    list_fetch("v14", "v16", False)
    for i in range(16): A(f"v_readlane_b32 s{64+i}, v4, {i}")
    A("s_nop 7")
    A("s_branch L_vround")
    lab("L_knext")
    A("s_barrier", "#3")
    list_fetch("v152", "v153", True)
    A("s_sub_u32 s58, s58, 1")
    A("s_cmp_lg_u32 s58, 0"); A("s_cselect_b32 s57, 2, 0")
    for i in range(8): A(f"v_readlane_b32 s{64+i}, v4, {8*i}")
    A("s_nop 7")
    A("s_branch L_kround")

    lab("L_slow")
    C("general list: one item per distinct (position, physical block) with valid tokens, ordered by")
    C("(first sequence, position); item = {block offset, valid tokens per sequence}; split evenly over g")
    TB, PK, NVv = 24, 40, 56
    A("s_load_dwordx4 s[44:47], s[12:13], 0")
    A("v_lshlrev_b32 v60, 2, v0")
    for b in range(4):
        for e in range(4): A(f"global_load_dword v{TB+4*b+e}, v60, s[10:11] offset:{1024*b+256*e}")
    C("ctx <= 0 masks every position: softmax is uniform, i.e. all positions with score 0")
    A(f"v_cmp_lt_i32 vcc, 0, {vCtx}")
    A("s_nop 1")
    A(f"v_cndmask_b32 {vScale}, 0, {vScale}, vcc")
    A("s_waitcnt vmcnt(0) lgkmcnt(0)")
    for b in range(4):
        A(f"s_cmp_le_i32 s{44+b}, 0"); A(f"s_cselect_b32 s{44+b}, 4096, s{44+b}"); A(f"s_min_i32 s{44+b}, s{44+b}, 4096")
    for e in range(4):
        A("v_lshlrev_b32 v61, 4, v0"); A(f"v_add_u32 v61, {1024*e}, v61")
        for b in range(4):
            t = TB+4*b+e
            A(f"v_cmp_gt_i32 vcc, 0, v{t}"); A(f"v_add_u32 v62, 640, v{t}"); A("s_nop 0"); A(f"v_cndmask_b32 v{t}, v{t}, v62, vcc")
            A(f"v_sub_u32 v{NVv+b}, s{44+b}, v61"); A(f"v_med3_i32 v{NVv+b}, v{NVv+b}, 0, 16")
            A(f"v_cmp_lt_i32 vcc, 0, v{NVv+b}"); A(f"v_lshlrev_b32 v{NVv+b}, {8*b}, v{NVv+b}"); A("s_nop 0")
            A(f"v_cndmask_b32 v{t}, {-1-b}, v{t}, vcc")
        for b in range(4):
            t = TB+4*b+e; p = PK+4*b+e
            A(f"v_mov_b32 v{p}, v{NVv+b}")
            for b2 in range(b+1, 4):
                A(f"v_cmp_eq_u32 vcc, v{t}, v{TB+4*b2+e}"); A("s_nop 1"); A(f"v_cndmask_b32 v62, 0, v{NVv+b2}, vcc"); A(f"v_or_b32 v{p}, v{p}, v62")
            for b2 in range(b):
                A(f"v_cmp_ne_u32 vcc, v{t}, v{TB+4*b2+e}"); A("s_nop 1"); A(f"v_cndmask_b32 v{p}, 0, v{p}, vcc")
    A("s_mov_b32 s56, 0")
    for k in range(16):
        A(f"v_cmp_ne_u32 vcc, 0, v{PK+k}"); A(f"s_mov_b32 s{68+k}, s56"); A("s_bcnt1_i32_b64 s40, vcc"); A("s_add_u32 s56, s56, s40")
    A("s_mul_i32 s40, s21, s56"); A("s_add_u32 s41, s40, s56"); A("s_lshr_b32 s40, s40, 5"); A("s_lshr_b32 s41, s41, 5")
    A("s_sub_u32 s41, s41, s40", "item count of this workgroup")
    A("v_and_b32 v61, 31, v0"); A("v_lshlrev_b32 v61, 3, v61"); A("v_bfrev_b32 v62, 1"); A("v_mov_b32 v63, 0")
    A(f"ds_write_b64 v61, v[62:63] offset:{L_LIST}")
    A("s_waitcnt lgkmcnt(0)")
    for k in range(16):
        A(f"v_cmp_ne_u32 s[42:43], 0, v{PK+k}")
        A(f"s_sub_u32 s56, s{68+k}, s40")
        A(f"v_lshl_add_u32 v62, v{TB+k}, 16, s53")
        A(f"v_mov_b32 v63, v{PK+k}")
        A("v_mbcnt_lo_u32_b32 v61, s42, 0"); A("v_mbcnt_hi_u32_b32 v61, s43, v61")
        A("v_add_u32 v61, s56, v61")
        A("v_cmp_gt_u32 vcc, s41, v61")
        A("v_lshlrev_b32 v61, 3, v61")
        A("s_and_b64 exec, vcc, s[42:43]")
        A(f"ds_write_b64 v61, v[62:63] offset:{L_LIST}")
        A("s_mov_b64 exec, -1")
        A("s_waitcnt lgkmcnt(0)")
    A("s_add_u32 s58, s41, 15"); A("s_lshr_b32 s58, s58, 4", "rounds")
    A(f"v_mov_b32 {vNv}, 0", "this pass counts no token")
    A("s_cmp_lg_u32 s58, 0"); A("s_cselect_b32 s57, 3, 1")
    A("s_branch L_kverified")
    return "\n".join(g.L)

KD = f"""
.section .rodata,"a"
.p2align 6
.amdhsa_kernel {NAME}
  .amdhsa_next_free_vgpr 256
  .amdhsa_next_free_sgpr 102
  .amdhsa_accum_offset 256
  .amdhsa_group_segment_fixed_size 0
  .amdhsa_kernarg_size 64
  .amdhsa_user_sgpr_count 2
  .amdhsa_user_sgpr_kernarg_segment_ptr 1
  .amdhsa_system_sgpr_workgroup_id_x 1
.end_amdhsa_kernel
"""
def parser():
    p = argparse.ArgumentParser()
    p.add_argument("--stamps", type=int, default=0)
    p.add_argument("--bar1", type=int, default=10)
    p.add_argument("--bar2", type=int, default=11)
    p.add_argument("--bar3", type=int, default=26)
    p.add_argument("--qpos", type=int, default=4)
    p.add_argument("--cpos", type=int, default=3)
    p.add_argument("--pdepth", type=int, default=1)
    p.add_argument("--hperm", default="67014523")
    p.add_argument("--scramble", type=int, default=0)
    p.add_argument("--spin", type=lambda x: int(x, 0), default=0x200000)
    p.add_argument("--probe", default="")
    p.add_argument("--probemul", type=int, default=10)
    p.add_argument("--probewg", type=int, default=-1)
    p.add_argument("-o", default="out.s")
    return p
if __name__ == "__main__":
    o = parser().parse_args()
    open(o.o, "w").write(HEADER + gen(o) + KD)
```
